```python
import torch

def _softmax(x, axis=-1):
    return torch.softmax(x, dim=axis)

def _gelu(x):
    return torch.nn.functional.gelu(x, approximate='tanh')

def _silu(x):
    return torch.nn.functional.silu(x)

def _sigmoid(x):
    return torch.sigmoid(x)

def _layernorm(x, axis=-1, eps=1e-05):
    m = x.mean(dim=axis, keepdim=True)
    v = x.var(dim=axis, keepdim=True, unbiased=False)
    return (x - m) / torch.sqrt(v + eps)

def _scatter_add(tgt, idx, src, axis=0):
    return tgt.clone().index_add_(axis, idx, src)

def _segment_sum(src, seg, n):
    out = torch.zeros((n,) + src.shape[1:], dtype=src.dtype)
    return out.index_add_(0, seg, src)

def _pad(x, pw):
    flat = tuple((v for pair in reversed(pw) for v in pair))
    return torch.nn.functional.pad(x, flat)
kernel_name = 'adaLN_cond__linear_kernel_hedgehog__geglu_ffn__prompt'

def setup_inputs():

    _w = lambda a: (lambda t: t.to(torch.bfloat16) if t.is_floating_point() else t)(torch.as_tensor(a))

    def _A_setup():
        B, S, D, H = (1, 2048, 448, 16)
        Dh = D // H
        return {'x': _w((lambda *s: torch.randn(*s, dtype=torch.bfloat16) * 0.05)(B, S, D)), 'wqkv': _w((lambda *s: torch.randn(*s, dtype=torch.bfloat16) * 0.4)(D, 3 * D)), 'w_phi': _w((lambda *s: torch.randn(*s, dtype=torch.bfloat16) * 0.4)(H, Dh, Dh) * Dh ** (-0.5)), 'wo': _w((lambda *s: torch.randn(*s, dtype=torch.bfloat16) * 0.05)(D, D))}
    _A_in = _A_setup()

    def _B_setup():
        B, S, D, F = (1, 2048, 448, 1792)
        return {'x': _w((lambda *s: torch.randn(*s, dtype=torch.bfloat16) * 0.05)(B, S, D)), 'w_gate': _w((lambda *s: torch.randn(*s, dtype=torch.bfloat16) * 0.05)(D, F)), 'w_up': _w((lambda *s: torch.randn(*s, dtype=torch.bfloat16) * 0.05)(D, F)), 'w_down': _w((lambda *s: torch.randn(*s, dtype=torch.bfloat16) * 0.05)(F, D))}
    _B_in = _B_setup()
    return {'A_x': _A_in['x'], 'A_wqkv': _A_in['wqkv'], 'A_w_phi': _A_in['w_phi'], 'A_wo': _A_in['wo'], 'B_x': _B_in['x'], 'B_w_gate': _B_in['w_gate'], 'B_w_up': _B_in['w_up'], 'B_w_down': _B_in['w_down'], 'c': _w((lambda *s: torch.randn(*s, dtype=torch.bfloat16) * 0.1)(1, 448) * 8.0), 'w_mod': _w((lambda *s: torch.randn(*s, dtype=torch.bfloat16) * 0.1)(448, 6 * 448) * 448 ** (-0.5) * 8.0)}

def reference(A_x, A_wqkv, A_w_phi, A_wo, B_x, B_w_gate, B_w_up, B_w_down, c, w_mod):

    def _A_ref(x, wqkv, w_phi, wo):
        B, S, D = x.shape
        H = 16
        Dh = D // H
        qkv = (lambda x, *d: x.permute(*d))((x @ wqkv).reshape(B, S, 3, H, Dh), 2, 0, 3, 1, 4)
        q, k, v = (qkv[0], qkv[1], qkv[2])
        pq = torch.einsum('bhsd,hdf->bhsf', q, w_phi)
        pk = torch.einsum('bhsd,hdf->bhsf', k, w_phi)
        phi_q = torch.concatenate([_softmax(pq, axis=-1), _softmax(-pq, axis=-1)], axis=-1)
        phi_k = torch.concatenate([_softmax(pk, axis=-1), _softmax(-pk, axis=-1)], axis=-1)
        kv = torch.einsum('bhsf,bhsd->bhfd', phi_k, v)
        z = torch.einsum('bhsf->bhf', phi_k)
        num = torch.einsum('bhqf,bhfd->bhqd', phi_q, kv)
        den = torch.einsum('bhqf,bhf->bhq', phi_q, z)[..., None] + 1e-06
        o = num / den
        return (lambda x, *d: x.permute(*d))(o, 0, 2, 1, 3).reshape(B, S, D) @ wo

    def _B_ref(x, w_gate, w_up, w_down):
        return _gelu(x @ w_gate) * (x @ w_up) @ w_down
    x = A_x
    mod = (_silu(c) @ w_mod).reshape(c.shape[0], 6, 1, -1)
    sa, ca, ga, sb, cb, gb = (mod[:, 0].clone(), mod[:, 1].clone(), mod[:, 2].clone(), mod[:, 3].clone(), mod[:, 4].clone(), mod[:, 5].clone())
    h = _layernorm(x, axis=-1) * (1 + ca) + sa
    x = x + ga * _A_ref(h, A_wqkv, A_w_phi, A_wo)
    h = _layernorm(x, axis=-1) * (1 + cb) + sb
    x = x + gb * _B_ref(h, B_w_gate, B_w_up, B_w_down)
    return x
```

```python
import re

TRANS = ("v_exp_f32", "v_log_f32", "v_rcp_f32", "v_rsq_f32", "v_sqrt_f32", "v_sin_f32", "v_cos_f32")


def parse_reg(tok):
    tok = tok.strip()
    neg = tok.lstrip("-|").rstrip("|")
    if neg.startswith("abs(") or neg.startswith("neg("):
        neg = neg[4:-1]
    m = re.fullmatch(r"([vas])(\d+)", neg)
    if m:
        return {(m.group(1), int(m.group(2)))}
    m = re.fullmatch(r"([vas])\[(\d+):(\d+)\]", neg)
    if m:
        return {(m.group(1), i) for i in range(int(m.group(2)), int(m.group(3)) + 1)}
    if neg == "vcc":
        return {("s", 106), ("s", 107)}
    if neg == "vcc_lo":
        return {("s", 106)}
    if neg == "vcc_hi":
        return {("s", 107)}
    if neg == "exec":
        return {("s", 126), ("s", 127)}
    if neg == "exec_lo":
        return {("s", 126)}
    if neg == "exec_hi":
        return {("s", 127)}
    if neg == "m0":
        return {("s", 124)}
    return set()


EXEC = {("s", 126), ("s", 127)}
VCC = {("s", 106), ("s", 107)}
M0 = {("s", 124)}


class Ins:
    __slots__ = ("text", "mn", "ops", "mods", "defs", "uses", "kind", "A", "B", "C", "passes", "states", "sdata")


def classify(text):
    t = text.split(";")[0].strip()
    sp = t.split(None, 1)
    mn = sp[0]
    rest = sp[1] if len(sp) > 1 else ""
    parts = [p.strip() for p in rest.split(",")] if rest else []
    mods = ""
    if parts:
        last = parts[-1].split(None, 1)
        parts[-1] = last[0]
        mods = last[1] if len(last) > 1 else ""
    ops = []
    for p in parts:
        ops.append(p)
    i = Ins()
    i.text, i.mn, i.ops, i.mods = text, mn, ops, mods
    if "op_sel" in rest or "neg_lo" in rest or "neg_hi" in rest or "quad_perm" in rest:
        r2 = re.sub(r"\b(op_sel|op_sel_hi|neg_lo|neg_hi|quad_perm):\[[^\]]*\]", "", rest)
        parts = [p.strip() for p in r2.split(",")]
        last = parts[-1].split(None, 1)
        parts[-1] = last[0]
        i.mods = rest
        i.ops = ops = parts
    R = [parse_reg(o) for o in ops]
    i.defs, i.uses, i.A, i.B, i.C, i.passes, i.states, i.sdata = set(), set(), set(), set(), set(), 0, 1, set()
    allr = set().union(*R) if R else set()
    if mn.startswith("v_mfma"):
        i.kind = "mfma"
        i.defs = R[0]
        i.A, i.B, i.C = R[1], R[2], R[3]
        i.uses = R[1] | R[2] | R[3]
        i.passes = 8 if "32x32x16" in mn else 4
    elif mn.startswith("v_"):
        i.kind = "valu"
        base = mn.replace("_e32", "").replace("_e64", "").replace("_dpp", "").replace("_sdwa", "")
        if base.startswith("v_cmpx"):
            i.defs = set(EXEC)
            i.uses = allr
        elif base.startswith("v_permlane") and "swap" in base:
            i.defs = R[0] | R[1]
            i.uses = R[0] | R[1]
        elif base in ("v_add_co_u32", "v_sub_co_u32", "v_addc_co_u32", "v_subb_co_u32"):
            i.defs = R[0] | R[1]
            i.uses = set().union(*R[2:])
        elif base == "v_nop":
            pass
        else:
            i.defs = R[0]
            i.uses = set().union(*R[1:]) if len(R) > 1 else set()
            if base.startswith(("v_fmac", "v_dot2c", "v_pk_fmac", "v_mac", "v_writelane")) or "row_" in i.mods or "quad_perm" in i.mods or "_dpp" in mn:
                i.uses |= R[0]
    elif mn.startswith("buffer_") or mn.startswith("global_"):
        i.kind = "vmem"
        lds = bool(re.search(r"\blds\b", i.mods)) or "_lds_" in mn
        if mn.startswith("buffer_load") and not lds:
            i.defs = R[0]
            i.uses = set().union(*R[1:])
        elif mn.startswith("global_load") and not lds:
            i.defs = R[0]
            i.uses = set().union(*R[1:])
        elif lds:
            i.uses = allr | M0
        elif "atomic" in mn and re.search(r"\bsc0\b", i.mods):
            if mn.startswith("buffer"):
                i.defs = R[0]
                i.uses = allr
            else:
                i.defs = R[0]
                i.uses = set().union(*R[1:])
        elif mn in ("buffer_inv", "buffer_wbl2"):
            pass
        else:
            i.uses = allr
            d = R[0] if mn.startswith("buffer") else R[1]
            if len(d) >= 3:
                i.sdata = d
    elif mn.startswith("ds_"):
        i.kind = "ds"
        if mn.startswith("ds_read") or "rtn" in mn or mn.startswith(("ds_bpermute", "ds_permute", "ds_swizzle")):
            i.defs = R[0]
            i.uses = set().union(*R[1:])
        else:
            i.uses = allr
    elif mn.startswith("s_"):
        i.kind = "salu"
        if mn.startswith(("s_load", "s_buffer_load")):
            i.kind = "smem"
            i.defs = R[0]
            i.uses = set().union(*R[1:])
        elif mn.startswith(("s_cmp", "s_bitcmp")):
            i.uses = allr
        elif mn in ("s_nop",):
            i.states = int(ops[0], 0) + 1
        elif mn.startswith(("s_waitcnt", "s_barrier", "s_branch", "s_cbranch", "s_setprio", "s_sleep", "s_endpgm", "s_setreg", "s_sethalt")):
            if mn.startswith("s_setreg"):
                i.uses = allr
        elif mn.startswith("s_memtime") or mn.startswith("s_memrealtime"):
            i.kind = "smem"
            i.defs = R[0]
        else:
            i.defs = R[0]
            i.uses = set().union(*R[1:])
            if "saveexec" in mn:
                i.defs |= EXEC
                i.uses |= EXEC
    else:
        raise ValueError("unknown instruction: " + text)
    return i


def is_trans(i):
    return i.mn.replace("_e32", "").replace("_e64", "") in TRANS


def vg(s):
    return {r for r in s if r[0] in "va"}


def sg(s):
    return {r for r in s if r[0] == "s"}


class Asm:
    def __init__(self):
        self.lines = []
        self.hist = []
        self.vm = []
        self.lg = []
        self.sm = []
        self.nid = 0
        self.nops_added = 0
        self.count = 0

    def raw(self, s):
        self.lines.append(s)

    def c(self, s):
        self.lines.append("    ; " + s)

    def reset_state(self):
        self.hist, self.vm, self.lg, self.sm = [], [], [], []

    def label(self, name, pad=True):
        self.lines.append(name + ":")
        if pad:
            self._emit(classify("s_nop 4"))

    def _need(self, n):
        need = 0
        dist = 0
        nv, ns = vg(n.uses), sg(n.uses)
        ndefv = vg(n.defs)
        ndpp = n.kind == "valu" and ("row_" in n.mods or "quad_perm" in n.mods or "_dpp" in n.mn)
        nperm = n.mn.startswith("v_permlane")
        nrl = n.mn.startswith(("v_readfirstlane", "v_readlane"))
        for p in reversed(self.hist):
            req = 0
            if p.kind == "valu":
                pv, ps = vg(p.defs), sg(p.defs)
                isdot = p.mn.startswith("v_dot")
                if n.kind == "mfma" and pv & nv:
                    req = max(req, 3 if isdot else 2)
                if isdot and (pv & (nv | ndefv)):
                    same = p.mn == n.mn
                    if same and len(n.ops) >= 3 and not (pv & (parse_reg(n.ops[1]) | parse_reg(n.ops[2]))):
                        pass
                    else:
                        req = max(req, 3)
                if ndpp and pv & nv:
                    req = max(req, 2)
                if nperm and pv & nv:
                    req = max(req, 2)
                if nrl and pv & nv:
                    req = max(req, 1)
                if is_trans(p) and n.kind in ("valu", "mfma") and pv & nv:
                    req = max(req, 1)
                if ("op_sel" in p.mods or "_sdwa" in p.mn or "dst_sel" in p.mods) and n.kind == "valu" and pv & (nv | ndefv):
                    req = max(req, 1)
                if ps:
                    if n.kind == "vmem" and ps & ns:
                        req = max(req, 5)
                    if n.kind == "valu" and ps & ns:
                        req = max(req, 4 if n.mn.startswith(("v_readlane", "v_writelane")) else 2)
                    if n.kind in ("salu", "smem") and ps & ns:
                        req = max(req, 1)
                    if ps & EXEC:
                        if ndpp:
                            req = max(req, 5)
                        if nrl or nperm or n.kind == "mfma":
                            req = max(req, 4)
            elif p.kind == "mfma":
                big = {4: 8, 8: 12}[p.passes]
                if n.kind == "mfma":
                    if p.defs & (n.A | n.B):
                        req = max(req, big)
                    if p.defs & n.C:
                        if not (p.defs == n.C and p.passes == n.passes):
                            req = max(req, big - 2)
                    elif p.defs & n.defs:
                        req = max(req, big)
                else:
                    if p.defs & (nv | ndefv):
                        req = max(req, big)
                    if n.kind == "valu" and p.C & ndefv:
                        req = max(req, {4: 3, 8: 7}[p.passes])
                    if n.kind in ("vmem", "ds") and p.C & ndefv:
                        req = max(req, {4: 3, 8: 7}[p.passes])
            elif p.kind in ("vmem",):
                if p.sdata and p.sdata & ndefv:
                    req = max(req, 2)
            elif p.kind == "salu":
                if (p.defs & M0) and (n.uses & M0) and n.kind in ("vmem", "ds"):
                    req = max(req, 1)
            if req > dist:
                need = max(need, req - dist)
            dist += p.states
            if dist >= 24:
                break
        return need

    def _emit(self, n):
        self.lines.append("    " + n.text)
        self.hist.append(n)
        if len(self.hist) > 40:
            self.hist = self.hist[-30:]
        self.count += 1

    def _waits(self, n):
        touch = n.uses | n.defs
        vmn = None
        for k in range(len(self.vm) - 1, -1, -1):
            if self.vm[k][1] & touch:
                vmn = len(self.vm) - 1 - k
                break
        lgn = None
        for k in range(len(self.lg) - 1, -1, -1):
            if self.lg[k][1] & touch:
                lgn = len(self.lg) - 1 - k
                break
        if any(d & touch for d in self.sm):
            lgn = 0
        if self.sm and lgn is not None:
            lgn = 0
        if vmn is not None or lgn is not None:
            self.wait(vm=vmn, lg=lgn)

    def wait(self, vm=None, lg=None):
        s = "s_waitcnt"
        did = False
        if vm is not None and vm < len(self.vm):
            vm = min(vm, 63)
            s += " vmcnt(%d)" % vm
            self.vm = self.vm[len(self.vm) - vm:] if vm else []
            did = True
        if lg is not None and (lg < len(self.lg) or self.sm):
            lg = min(lg, 15)
            s += " lgkmcnt(%d)" % lg
            self.lg = self.lg[len(self.lg) - lg:] if lg else []
            if lg == 0:
                self.sm = []
            did = True
        if did:
            self._emit(classify(s))

    def force_wait(self, vm=None, lg=None):
        s = "s_waitcnt"
        if vm is not None:
            s += " vmcnt(%d)" % vm
            self.vm = self.vm[max(0, len(self.vm) - vm):] if vm else []
        if lg is not None:
            s += " lgkmcnt(%d)" % lg
            self.lg = self.lg[max(0, len(self.lg) - lg):] if lg else []
            if lg == 0:
                self.sm = []
        self._emit(classify(s))

    def wait_vm_id(self, tag):
        for k, (i, _) in enumerate(self.vm):
            if i == tag:
                n = len(self.vm) - 1 - k
                self.wait(vm=min(n, 63))
                return

    def wait_lg_id(self, tag):
        for k, (i, _) in enumerate(self.lg):
            if i == tag:
                self.wait(lg=len(self.lg) - 1 - k)
                return

    def i(self, text):
        n = classify(text)
        self._waits(n)
        need = self._need(n)
        while need > 0:
            k = min(need, 16)
            self._emit(classify("s_nop %d" % (k - 1)))
            self.nops_added += k
            need -= k
        self._emit(n)
        self.nid += 1
        if n.kind == "vmem" and n.mn not in ():
            self.vm.append((self.nid, set(n.defs)))
            if len(self.vm) > 63:
                pass
        elif n.kind == "ds":
            self.lg.append((self.nid, set(n.defs)))
        elif n.kind == "smem":
            self.sm.append(set(n.defs))
        return self.nid

    def barrier(self, vm=None):
        self.wait(vm=vm, lg=0)
        self.i("s_barrier")

    def text(self):
        return "\n".join(self.lines) + "\n"


def v(a, n=1):
    return "v%d" % a if n == 1 else "v[%d:%d]" % (a, a + n - 1)


def ag(a, n=1):
    return "a%d" % a if n == 1 else "a[%d:%d]" % (a, a + n - 1)


def s(a, n=1):
    return "s%d" % a if n == 1 else "s[%d:%d]" % (a, a + n - 1)
```

```python
import struct
import sys
from asmlib import Asm, v, ag, s

NAME = "adaLN_cond__linear_kernel_hedgehog__geglu_ffn__prompt"

MOD, MOD_SZ = 0x0, 2688 * 4
KV, KV_SZ = 0x10000, 0x20000
STATS, STATS_SZ = 0x30000, 0x10000
PHIQ, PHIQ_SZ = 0x100000, 0x400000
Y, Y_SZ = 0x500000, 64 * 28 * 1024
X1, X1_SZ = 0x700000, 2048 * 896
ACT, ACT_SZ = 0x900000, 64 * 112 * 1024
WOF, WOF_SZ = 0x1000000, 512 * 1024
WGUF, WGUF_SZ = 0x1100000, 112 * 29 * 1024
WDF, WDF_SZ = 0x1500000, 14 * 112 * 1024

P_X, P_WQKV, P_WPHI, P_WO, P_BX, P_WG, P_WU, P_WD = 16, 18, 20, 22, 24, 26, 28, 30
P_C, P_WMOD, P_OUT, P_DBG, P_WS = 32, 34, 36, 38, 40
OOB = 0x7F000000
LOG2E = 1.4426950408889634


def f2u(x):
    return "0x%08x" % struct.unpack("<I", struct.pack("<f", x))[0]


def load_args(a):
    a.i("s_load_dwordx16 s[16:31], s[0:1], 0")
    a.i("s_load_dwordx8 s[32:39], s[0:1], 64")
    a.i("s_load_dwordx2 s[40:41], s[0:1], 96")


def srd(a, d, ptr, size, off=0):
    if off:
        a.i(f"s_add_u32 s{d}, s{ptr}, {hex(off)}")
        a.i(f"s_addc_u32 s{d+1}, s{ptr+1}, 0")
    else:
        a.i(f"s_mov_b32 s{d}, s{ptr}")
        a.i(f"s_mov_b32 s{d+1}, s{ptr+1}")
    a.i(f"s_mov_b32 s{d+2}, {hex(size)}")
    a.i(f"s_mov_b32 s{d+3}, 0x20000")


def begin(a, label):
    a.raw(".p2align 8")
    a.raw(f".type {label},@function")
    a.raw(f"{label}:")
    a.reset_state()


def wave_lane(a, s_wave, v_lane, tmp):
    a.i(f"v_lshrrev_b32 v{tmp}, 6, v0")
    a.i(f"v_and_b32 v{v_lane}, 63, v0")
    a.i(f"v_readfirstlane_b32 s{s_wave}, v{tmp}")


def cluster_ids(a, s_m, s_j):
    a.i(f"s_and_b32 s{s_m}, s2, 7")
    a.i(f"s_lshl_b32 s{s_m}, s{s_m}, 1")
    a.i(f"s_bfe_u32 s{s_j}, s2, 0x10003")
    a.i(f"s_add_u32 s{s_m}, s{s_m}, s{s_j}")
    a.i(f"s_lshr_b32 s{s_j}, s2, 4")


def allsum32(a, r, t, op="v_add_f32"):
    a.i(f"v_mov_b32 v{t}, v{r}")
    a.i(f"v_permlane32_swap_b32 v{r}, v{t}")
    a.i(f"{op} v{r}, v{r}, v{t}")


def k0(a):
    L = "k0_kernel"
    begin(a, L)
    load_args(a)
    SW, LN = 3, 1
    wave_lane(a, SW, LN, 2)
    a.i("s_cmp_lt_u32 s2, 84")
    a.i("s_cbranch_scc1 k0_mod")
    a.i("s_cmp_lt_u32 s2, 182")
    a.i("s_cbranch_scc1 k0_wgu")
    a.i("s_cmp_lt_u32 s2, 231")
    a.i("s_cbranch_scc1 k0_wd")
    a.i("s_cmp_lt_u32 s2, 247")
    a.i("s_cbranch_scc1 k0_wo")
    a.i("s_cmp_lt_u32 s2, 255")
    a.i("s_cbranch_scc1 k0_zero")
    a.i("s_endpgm")

    pend = list(a.sm)

    def role(name):
        a.label(name)
        a.sm = list(pend)
        a.vm, a.lg = [], []

    role("k0_zero")
    srd(a, 44, P_WS, KV_SZ, KV)
    a.i("s_sub_u32 s4, s2, 247")
    a.i("s_lshl_b32 s4, s4, 14")
    a.i("v_lshlrev_b32 v2, 4, v0")
    for r in range(4, 8):
        a.i(f"v_mov_b32 v{r}, 0")
    for k in range(4):
        a.i(f"buffer_store_dwordx4 v[4:7], v2, s[44:47], s4 offen")
        if k < 3:
            a.i("s_add_u32 s4, s4, 4096")
    a.i("s_endpgm")

    role("k0_mod")
    srd(a, 44, P_WMOD, 448 * 5376)
    srd(a, 48, P_C, 896)
    srd(a, 52, P_WS, MOD_SZ, MOD)
    a.i("v_lshrrev_b32 v2, 2, v0")
    a.i("v_and_b32 v3, 3, v0")
    a.i("v_mul_u32_u24 v4, 5376, v2")
    a.i("v_lshl_add_u32 v4, v3, 4, v4")
    a.i("v_lshlrev_b32 v5, 1, v2")
    a.i("s_lshl_b32 s4, s2, 6")
    W0, C0, AC = 16, 44, 52
    for p in range(7):
        a.i(f"buffer_load_ushort v{C0+p}, v5, s[48:51], 0 offen offset:{p*128}")
    for p in range(7):
        a.i(f"buffer_load_dwordx4 {v(W0+4*p,4)}, v4, s[44:47], s4 offen")
        if p < 6:
            a.i(f"s_add_u32 s4, s4, {64*5376}")
    for p in range(7):
        c = C0 + p
        a.i(f"v_lshlrev_b32 v{c}, 16, v{c}")
        a.i(f"v_mul_f32 v6, {f2u(-LOG2E)}, v{c}")
        a.i("v_exp_f32 v6, v6")
        a.i("v_add_f32 v6, 1.0, v6")
        a.i("v_rcp_f32 v6, v6")
        a.i(f"v_mul_f32 v{c}, v{c}, v6")
        a.i(f"v_cvt_pk_bf16_f32 v{c}, v{c}, v{c}")
        a.i(f"v_lshlrev_b32 v{c}, 16, v{c}")
    for k in range(8):
        a.i(f"v_mov_b32 v{AC+k}, 0")
    for p in range(7):
        for q in range(4):
            w = W0 + 4 * p + q
            a.i(f"v_lshlrev_b32 v6, 16, v{w}")
            a.i(f"v_and_b32 v7, 0xffff0000, v{w}")
            a.i(f"v_fmac_f32 v{AC+2*q}, v{C0+p}, v6")
            a.i(f"v_fmac_f32 v{AC+2*q+1}, v{C0+p}, v7")
    for rot in (8, 4):
        for k in range(8):
            a.i(f"v_add_f32_dpp v{AC+k}, v{AC+k}, v{AC+k} row_ror:{rot} row_mask:0xf bank_mask:0xf")
    for op in ("v_permlane16_swap_b32", "v_permlane32_swap_b32"):
        for k in range(8):
            a.i(f"v_mov_b32 v{W0+k}, v{AC+k}")
        for k in range(8):
            a.i(f"{op} v{AC+k}, v{W0+k}")
        for k in range(8):
            a.i(f"v_add_f32 v{AC+k}, v{AC+k}, v{W0+k}")
    a.i("s_lshl_b32 s5, s3, 7")
    a.i("v_lshlrev_b32 v6, 5, v3")
    a.i("v_add_u32 v6, s5, v6")
    a.i(f"ds_write_b128 v6, {v(AC,4)}")
    a.i(f"ds_write_b128 v6, {v(AC+4,4)} offset:16")
    a.barrier()
    a.i("s_cmp_eq_u32 s3, 0")
    a.i("s_cbranch_scc0 k0_end")
    a.i("v_and_b32 v6, 31, v0")
    a.i("v_lshlrev_b32 v6, 2, v6")
    for k in range(4):
        a.i(f"ds_read_b32 v{8+k}, v6 offset:{k*128}")
    a.i("v_add_f32 v8, v8, v9")
    a.i("v_add_f32 v10, v10, v11")
    a.i("v_add_f32 v8, v8, v10")
    a.i("v_cvt_pk_bf16_f32 v8, v8, v8")
    a.i("v_lshlrev_b32 v8, 16, v8")
    a.i("s_mov_b32 s6, 0")
    a.i("s_sub_u32 s7, s2, 14")
    a.i("s_cmp_lt_u32 s7, 14")
    a.i("s_cselect_b32 s6, 1.0, s6")
    a.i("s_sub_u32 s7, s2, 56")
    a.i("s_cmp_lt_u32 s7, 14")
    a.i("s_cselect_b32 s6, 1.0, s6")
    a.i("v_add_f32 v8, s6, v8")
    a.i("v_cvt_pk_bf16_f32 v8, v8, v8")
    a.i("v_lshlrev_b32 v8, 16, v8")
    a.i("s_lshl_b32 s4, s2, 7")
    a.i("buffer_store_dword v8, v6, s[52:55], s4 offen")
    a.label("k0_end", pad=False)
    a.i("s_endpgm")

    def tr_addr(gu):
        a.i("v_bfe_u32 v8, v1, 2, 2")
        a.i("v_lshrrev_b32 v9, 5, v1")
        a.i("v_lshl_add_u32 v8, v9, 2, v8")
        a.i("v_lshlrev_b32 v8, 6, v8")
        a.i("v_and_b32 v9, 3, v1")
        a.i("v_lshl_add_u32 v8, v9, 3, v8")
        a.i("v_bfe_u32 v9, v1, 4, 1")
        a.i(f"v_lshl_add_u32 v8, v9, {10 if gu else 5}, v8")
        a.i("s_lshl_b32 s8, s3, 13")
        a.i("v_add_u32 v8, s8, v8")
        a.i("v_lshlrev_b32 v10, 4, v1")

    def src_off(rowbytes):
        a.i("v_lshrrev_b32 v4, 2, v1")
        a.i(f"v_mul_u32_u24 v4, {rowbytes}, v4")
        a.i("v_and_b32 v5, 3, v1")
        a.i("v_lshl_add_u32 v4, v5, 4, v4")

    def finish(descr):
        for n, (tag, off, sreg, imm) in enumerate(descr):
            a.wait_vm_id(tag)
            r = 16 + 4 * n
            a.i(f"ds_read_b64_tr_b16 {v(r,2)}, v8 offset:{off}")
            a.i(f"ds_read_b64_tr_b16 {v(r+2,2)}, v8 offset:{off+512}")
        for n, (tag, off, sreg, imm) in enumerate(descr):
            r = 16 + 4 * n
            a.i(f"buffer_store_dwordx4 {v(r,4)}, v10, s[56:59], s{sreg} offen offset:{imm}")
        a.i("s_endpgm")

    role("k0_wgu")
    srd(a, 44, P_WG, 448 * 3584)
    srd(a, 48, P_WU, 448 * 3584)
    srd(a, 56, P_WS, WGUF_SZ, WGUF)
    a.i("s_sub_u32 s4, s2, 84")
    a.i("s_lshl_b32 s4, s4, 2")
    a.i("s_add_u32 s4, s4, s3")
    assert all((w * 9363) >> 16 == w // 7 for w in range(392))
    a.i("s_mul_i32 s5, s4, 9363")
    a.i("s_lshr_b32 s5, s5, 16")
    a.i("s_mul_i32 s6, s5, 7")
    a.i("s_sub_u32 s6, s4, s6")
    src_off(3584)
    tr_addr(True)
    a.i(f"s_mul_i32 s7, s6, {4*16*3584}")
    a.i("s_lshl_b32 s9, s5, 6")
    a.i("s_add_u32 s7, s7, s9")
    a.i("s_mov_b32 m0, s8")
    tags = []
    for i in range(4):
        t0 = a.i("buffer_load_dwordx4 v4, s[44:47], s7 offen lds")
        a.i("s_add_u32 m0, m0, 1024")
        t1 = a.i("buffer_load_dwordx4 v4, s[48:51], s7 offen lds")
        tags.append(t1)
        if i < 3:
            a.i("s_add_u32 m0, m0, 1024")
            a.i(f"s_add_u32 s7, s7, {16*3584}")
    a.i(f"s_mul_i32 s10, s5, {58*1024}")
    a.i("s_lshl_b32 s9, s6, 12")
    a.i("s_add_u32 s10, s10, s9")
    a.i(f"s_add_u32 s11, s10, {29*1024}")
    d = []
    for i in range(4):
        for T in range(2):
            d.append((tags[i], i * 2048 + T * 32, 10 + T, i * 1024))
    finish(d)

    role("k0_wd")
    srd(a, 44, P_WD, 1792 * 896)
    srd(a, 56, P_WS, WDF_SZ, WDF)
    a.i("s_sub_u32 s4, s2, 182")
    a.i("s_lshl_b32 s4, s4, 2")
    a.i("s_add_u32 s4, s4, s3")
    assert all((w * 4682) >> 16 == w // 14 for w in range(196))
    a.i("s_mul_i32 s5, s4, 4682")
    a.i("s_lshr_b32 s5, s5, 16")
    a.i("s_mul_i32 s6, s5, 14")
    a.i("s_sub_u32 s6, s4, s6")
    src_off(896)
    tr_addr(False)
    a.i(f"s_mul_i32 s7, s6, {8*16*896}")
    a.i("s_lshl_b32 s9, s5, 6")
    a.i("s_add_u32 s7, s7, s9")
    a.i("s_mov_b32 m0, s8")
    tags = []
    for i in range(8):
        tags.append(a.i("buffer_load_dwordx4 v4, s[44:47], s7 offen lds"))
        if i < 7:
            a.i("s_add_u32 m0, m0, 1024")
            a.i(f"s_add_u32 s7, s7, {16*896}")
    a.i("s_lshl_b32 s10, s4, 13")
    a.i("s_add_u32 s11, s10, 4096")
    finish([(tags[i], i * 1024, 10 + i // 4, (i % 4) * 1024) for i in range(8)])

    role("k0_wo")
    srd(a, 44, P_WO, 448 * 896)
    srd(a, 56, P_WS, WOF_SZ, WOF)
    a.i("s_sub_u32 s5, s2, 231")
    src_off(896)
    a.i("v_cmp_gt_u32 vcc, 48, v1")
    a.i(f"v_mov_b32 v6, {hex(OOB)}")
    a.i("v_cndmask_b32 v6, v6, v4, vcc")
    tr_addr(False)
    a.i("s_lshr_b32 s6, s5, 2")
    a.i("s_mul_i32 s6, s6, 224")
    a.i("s_and_b32 s9, s5, 3")
    a.i("s_lshl_b32 s9, s9, 6")
    a.i("s_add_u32 s6, s6, s9")
    a.i(f"s_mul_i32 s7, s3, {4*28*896}")
    a.i("s_add_u32 s7, s7, s6")
    a.i("s_mov_b32 m0, s8")
    tags = []
    for i in range(8):
        tags.append(a.i(f"buffer_load_dwordx4 v{4 if i%2==0 else 6}, s[44:47], s7 offen lds"))
        if i < 7:
            a.i("s_add_u32 m0, m0, 1024")
            a.i(f"s_add_u32 s7, s7, {16*896 if i%2==0 else 12*896}")
    a.i("s_lshl_b32 s10, s5, 2")
    a.i("s_add_u32 s10, s10, s3")
    a.i("s_lshl_b32 s10, s10, 13")
    a.i("s_add_u32 s11, s10, 4096")
    finish([(tags[i], i * 1024, 10 + i // 4, (i % 4) * 1024) for i in range(8)])
    return (L, 256, 32768, 64, 0)


def softmax_pm(a, P, E, OUT, T, s_hf, s_L):
    mx, mn, t, b0, b1, sm = T, T + 1, T + 2, T + 3, T + 4, T + 5
    for m, op in ((mx, "v_max3_f32"), (mn, "v_min3_f32")):
        a.i(f"{op} v{m}, v{P}, v{P+1}, v{P+2}")
        for k in (3, 5, 7, 9):
            a.i(f"{op} v{m}, v{m}, v{P+k}, v{P+k+1}")
        a.i(f"{op} v{m}, v{m}, v{P+11}, v{P+11}")
        a.i(f"{op} v{t}, v{P+12}, v{P+13}, v{P+14}")
        a.i(f"{op} v{t}, v{t}, v{P+15}, v{m}")
        a.i(f"v_cndmask_b32_e64 v{m}, v{t}, v{m}, {s(s_hf,2)}")
    allsum32(a, mx, t, "v_max_f32")
    allsum32(a, mn, t, "v_min_f32")
    for sign in (0, 1):
        m = mn if sign else mx
        sl = f"-s{s_L}" if sign else f"s{s_L}"
        nsl = f"s{s_L}" if sign else f"-s{s_L}"
        a.i(f"v_mul_f32_e64 v{b0}, v{m}, {nsl}")
        a.i(f"v_mov_b32 v{b1}, 0xff800000")
        a.i(f"v_cndmask_b32_e64 v{b1}, v{b0}, v{b1}, {s(s_hf,2)}")
        for r in range(16):
            a.i(f"v_fma_f32 v{E+r}, v{P+r}, {sl}, v{b0 if r<12 else b1}")
        for r in range(16):
            a.i(f"v_exp_f32 v{E+r}, v{E+r}")
        a.i(f"v_add_f32 v{sm}, v{E}, v{E+1}")
        a.i(f"v_add_f32 v{t}, v{E+2}, v{E+3}")
        for r in range(4, 16, 2):
            a.i(f"v_add_f32 v{sm}, v{sm}, v{E+r}")
            a.i(f"v_add_f32 v{t}, v{t}, v{E+r+1}")
        a.i(f"v_add_f32 v{sm}, v{sm}, v{t}")
        allsum32(a, sm, t)
        a.i(f"v_rcp_f32 v{sm}, v{sm}")
        for r in range(16):
            a.i(f"v_mul_f32 v{E+r}, v{E+r}, v{sm}")
        for r in range(8):
            a.i(f"v_cvt_pk_bf16_f32 v{OUT+sign*8+r}, v{E+2*r}, v{E+2*r+1}")


MF = "v_mfma_f32_32x32x16_bf16"


def k1(a):
    L = "k1_kernel"
    begin(a, L)
    load_args(a)
    a.i("s_cmp_lt_u32 s2, 256")
    a.i("s_cbranch_scc1 k1_go")
    a.i("s_endpgm")
    a.label("k1_go", pad=False)
    SW, SM, SH = 3, 4, 5
    wave_lane(a, SW, 1, 2)
    cluster_ids(a, SM, SH)
    GS_L, RED_L = 86016, 90112
    accQ, accK, accV = 16, 32, 48
    WB, GB, HB, X, TM = 64, 88, 120, 128, 240
    S_X, S_W, S_PHI, S_MOD, S_KV, S_PQ = 44, 48, 52, 56, 60, 64
    s_hf, s_L, s_one = 68, 70, 71
    srd(a, S_X, P_X, 2048 * 896)
    srd(a, S_MOD, P_WS, MOD_SZ, MOD)
    srd(a, S_W, P_WQKV, 448 * 2688)
    a.i("v_and_b32 v2, 31, v1")
    a.i("v_lshrrev_b32 v3, 5, v1")
    a.i("v_lshlrev_b32 v4, 4, v0")
    a.i(f"buffer_load_dwordx4 {v(TM,4)}, v4, {s(S_MOD,4)}, 0 offen")
    a.i("v_mul_u32_u24 v4, 896, v2")
    a.i("v_lshl_add_u32 v4, v3, 4, v4")
    a.i(f"s_lshl_b32 s6, s{SM}, 2")
    a.i(f"s_add_u32 s6, s6, s{SW}")
    a.i(f"s_mul_i32 s7, s6, {32*896}")
    for k in range(28):
        a.i(f"buffer_load_dwordx4 {v(X+4*k,4)}, v4, {s(S_X,4)}, s7 offen offset:{k*32}")
    a.i("v_lshrrev_b32 v5, 2, v1")
    a.i("v_mul_u32_u24 v5, 2688, v5")
    a.i("v_and_b32 v6, 3, v1")
    a.i("v_lshl_add_u32 v5, v6, 4, v5")
    a.i(f"s_mul_i32 s8, s{SH}, 56")
    a.i(f"s_mul_i32 s9, s{SW}, {7*16*2688}")
    a.i("s_add_u32 s8, s8, s9")
    a.i(f"s_mul_i32 s9, s{SW}, {7*1024}")
    for kb in range(7):
        for part in range(3):
            a.i(f"s_add_u32 m0, s9, {part*28672 + kb*1024}")
            a.i(f"s_add_u32 s10, s8, {kb*16*2688 + part*896}")
            lastdma = a.i(f"buffer_load_dwordx4 v5, {s(S_W,4)}, s10 offen lds")
    a.i("v_cmp_gt_u32 vcc, 112, v0")
    a.i("v_subrev_u32 v6, 112, v0")
    a.i("v_cndmask_b32 v6, v6, v0, vcc")
    a.i("v_lshrrev_b32 v7, 1, v6")
    a.i("v_lshlrev_b32 v7, 6, v7")
    a.i("v_and_b32 v6, 1, v6")
    a.i("v_lshl_add_u32 v7, v6, 4, v7")
    a.i("v_cndmask_b32_e64 v6, 0, 32, vcc")
    a.i(f"v_add_u32 v7, v7, v6")
    a.i(f"v_add_u32 v7, {GS_L}, v7")
    a.i("v_cmp_gt_u32 vcc, 224, v0")
    a.i("s_and_saveexec_b64 s[10:11], vcc")
    a.i(f"ds_write_b128 v7, {v(TM,4)}")
    a.i("s_mov_b64 exec, s[10:11]")
    a.i(f"v_cmp_eq_u32_e64 {s(s_hf,2)}, 1, v3")
    a.i(f"s_mov_b32 s{s_L}, {f2u(LOG2E)}")
    a.i(f"s_mov_b32 s{s_one}, 0x3f803f80")
    srd(a, S_PHI, P_WPHI, 16 * 1568)
    srd(a, S_KV, P_WS, KV_SZ, KV)
    srd(a, S_PQ, P_WS, PHIQ_SZ, PHIQ)
    for k in range(4):
        a.i(f"v_mov_b32 v{TM+4+k}, 0")
    for r in range(112):
        a.i(f"v_dot2_f32_bf16 v{TM+4+(r&1)}, v{X+r}, s{s_one}, v{TM+4+(r&1)}")
        a.i(f"v_dot2_f32_bf16 v{TM+6+(r&1)}, v{X+r}, v{X+r}, v{TM+6+(r&1)}")
    a.i("v_lshlrev_b32 v8, 1, v2")
    a.i("v_mul_u32_u24 v9, 224, v3")
    a.i("v_add_u32 v8, v8, v9")
    a.i(f"v_mov_b32 v9, {hex(OOB)}")
    a.i("v_cmp_gt_u32 vcc, 28, v2")
    a.i("v_cndmask_b32 v8, v9, v8, vcc")
    a.i(f"v_cndmask_b32_e64 v9, v8, v9, {s(s_hf,2)}")
    a.i(f"s_mul_i32 s10, s{SH}, 1568")
    for blk in range(2):
        for j in range(8):
            d0 = blk * 16 + (j >> 2) * 8 + (j & 3)
            vo = 9 if d0 >= 24 else 8
            a.i(f"buffer_load_ushort v{accQ+blk*8+j}, v{vo}, {s(S_PHI,4)}, s10 offen offset:{d0*56}")
    RS, NB = 10, 11
    a.i(f"v_add_f32 v{NB}, v{TM+4}, v{TM+5}")
    a.i(f"v_add_f32 v{RS}, v{TM+6}, v{TM+7}")
    allsum32(a, NB, 12)
    allsum32(a, RS, 12)
    a.i(f"v_mul_f32 v{NB}, {f2u(1/448)}, v{NB}")
    a.i(f"v_mul_f32 v12, v{NB}, v{NB}")
    a.i(f"v_mul_f32 v{RS}, {f2u(1/448)}, v{RS}")
    a.i(f"v_sub_f32 v{RS}, v{RS}, v12")
    a.i(f"v_max_f32 v{RS}, 0, v{RS}")
    a.i(f"v_add_f32 v{RS}, {f2u(1e-5)}, v{RS}")
    a.i(f"v_rsq_f32 v{RS}, v{RS}")
    a.i(f"v_mul_f32_e64 v{NB}, -v{NB}, v{RS}")
    a.i("v_lshlrev_b32 v12, 2, v3")
    a.i("v_sub_u32 v12, v2, v12")
    for blk in range(2):
        for p in range(4):
            j = 2 * p
            f0 = blk * 16 + (j >> 2) * 8 + (j & 3)
            a.i(f"v_cmp_eq_u32 vcc, {f0}, v12")
            a.i(f"v_mov_b32 v13, 0x3f80")
            a.i(f"v_cndmask_b32 v13, 0, v13, vcc")
            a.i(f"v_cmp_eq_u32 vcc, {f0+1}, v12")
            a.i(f"v_mov_b32 v14, 0x3f800000")
            a.i(f"v_cndmask_b32 v13, v13, v14, vcc")
            a.i(f"v_accvgpr_write_b32 a{8+blk*4+p}, v13")
    for p in range(8):
        a.i(f"v_lshl_or_b32 v13, v{accQ+2*p+1}, 16, v{accQ+2*p}")
        a.i(f"v_accvgpr_write_b32 a{p}, v13")
    a.i("v_bfe_u32 v8, v1, 2, 2")
    a.i("v_lshl_add_u32 v8, v3, 3, v8")
    a.i("v_lshlrev_b32 v8, 6, v8")
    a.i("v_and_b32 v9, 3, v1")
    a.i("v_lshl_add_u32 v8, v9, 3, v8")
    a.i("v_bfe_u32 v9, v1, 4, 1")
    a.i("v_lshl_add_u32 v8, v9, 5, v8")
    a.i(f"v_add_u32 v14, {2*28672}, v8")
    a.i("v_lshlrev_b32 v9, 6, v3")
    a.i(f"v_add_u32 v9, {GS_L}, v9")
    a.barrier(vm=0)

    def rdW(k):
        b = WB + (k & 1) * 12
        for part in range(3):
            base, off = (8, part * 28672) if part < 2 else (14, 0)
            for q in range(2):
                a.i(f"ds_read_b64_tr_b16 {v(b+part*4+q*2,2)}, v{base} offset:{off + k*1024 + q*256}")

    def rdG(k):
        b = GB + (k & 1) * 16
        for q in range(4):
            a.i(f"ds_read_b128 {v(b+q*4,4)}, v9 offset:{k*128+q*16}")

    def hcode(k):
        g = GB + (k & 1) * 16
        h = HB + (k & 1) * 4
        out = []
        for p in range(4):
            t0, t1 = TM + 2 * p, TM + 2 * p + 1
            x = X + 4 * k + p
            out.append(f"v_lshlrev_b32 v{t0}, 16, v{x}")
            out.append(f"v_and_b32 v{t1}, 0xffff0000, v{x}")
            out.append(f"v_fma_f32 v{t0}, v{t0}, v{RS}, v{NB}")
            out.append(f"v_fma_f32 v{t1}, v{t1}, v{RS}, v{NB}")
            out.append(f"v_fma_f32 v{t0}, v{t0}, v{g+2*p}, v{g+8+2*p}")
            out.append(f"v_fma_f32 v{t1}, v{t1}, v{g+2*p+1}, v{g+8+2*p+1}")
            out.append(f"v_cvt_pk_bf16_f32 v{h+p}, v{t0}, v{t1}")
        return out

    rdG(0)
    rdW(0)
    rdG(1)
    for t in hcode(0):
        a.i(t)
    for k in range(28):
        if k + 1 < 28:
            rdW(k + 1)
        hc = hcode(k + 1) if k + 1 < 28 else []
        w = WB + (k & 1) * 12
        h = HB + (k & 1) * 4
        c = lambda r: (v(r, 16) if k else "0")
        a.i(f"{MF} {v(accK,16)}, {v(w+4,4)}, {v(h,4)}, {c(accK)}")
        for t in hc[:10]:
            a.i(t)
        a.i(f"{MF} {v(accV,16)}, {v(h,4)}, {v(w+8,4)}, {c(accV)}")
        for t in hc[10:19]:
            a.i(t)
        a.i(f"{MF} {v(accQ,16)}, {v(w,4)}, {v(h,4)}, {c(accQ)}")
        for t in hc[19:]:
            a.i(t)
        if k + 2 < 28:
            rdG(k + 2)
    KBf, P, E, OUT, T6 = 64, 72, 88, 104, 120
    for p in range(8):
        a.i(f"v_cvt_pk_bf16_f32 v{KBf+p}, v{accK+2*p}, v{accK+2*p+1}")
    a.i(f"{MF} {v(P,16)}, a[0:3], {v(KBf,4)}, 0")
    a.i(f"{MF} {v(P,16)}, a[4:7], {v(KBf+4,4)}, {v(P,16)}")
    VA, QB, PQ = 128, 136, 144
    a.i("v_cmp_eq_u32 vcc, 28, v2")
    a.i(f"v_mov_b32 v13, s{s_one}")
    for p in range(8):
        a.i(f"v_cvt_pk_bf16_f32 v{VA+p}, v{accV+2*p}, v{accV+2*p+1}")
        a.i(f"v_cndmask_b32 v{VA+p}, v{VA+p}, v13, vcc")
    for p in range(8):
        a.i(f"v_cvt_pk_bf16_f32 v{QB+p}, v{accQ+2*p}, v{accQ+2*p+1}")
    a.i(f"{MF} {v(PQ,16)}, a[0:3], {v(QB,4)}, 0")
    a.i(f"{MF} {v(PQ,16)}, a[4:7], {v(QB+4,4)}, {v(PQ,16)}")
    softmax_pm(a, P, E, OUT, T6, s_hf, s_L)
    TP, TN, PB = 16, 32, 160
    for sign, acc in ((0, TP), (1, TN)):
        a.i(f"{MF} {v(acc,16)}, {v(OUT+sign*8,4)}, a[8:11], 0")
        a.i(f"{MF} {v(acc,16)}, {v(OUT+sign*8+4,4)}, a[12:15], {v(acc,16)}")
    for sign, acc in ((0, TP), (1, TN)):
        for p in range(8):
            a.i(f"v_cvt_pk_bf16_f32 v{PB+sign*8+p}, v{acc+2*p}, v{acc+2*p+1}")
    KV0 = 176
    for sign in range(2):
        a.i(f"{MF} {v(KV0+sign*16,16)}, {v(VA,4)}, {v(PB+sign*8,4)}, 0")
        a.i(f"{MF} {v(KV0+sign*16,16)}, {v(VA+4,4)}, {v(PB+sign*8+4,4)}, {v(KV0+sign*16,16)}")
    a.i(f"s_lshl_b32 s10, s{SW}, 13")
    a.i(f"s_add_u32 s10, s10, {RED_L}")
    a.i("v_lshlrev_b32 v12, 4, v1")
    a.i("v_add_u32 v13, s10, v12")
    for g in range(8):
        a.i(f"ds_write_b128 v13, {v(KV0+4*g,4)} offset:{g*1024}")
    a.i(f"s_lshl_b32 s10, s{SW}, 11")
    a.i(f"s_add_u32 s10, s10, {RED_L}")
    a.i("v_add_u32 v13, s10, v12")
    a.barrier()
    R0 = 208
    for src in range(4):
        for g in range(2):
            a.i(f"ds_read_b128 {v(R0+src*8+g*4,4)}, v13 offset:{src*8192+g*1024}")
    a.i("v_lshlrev_b32 v14, 10, v3")
    a.i("v_lshl_add_u32 v14, v2, 2, v14")
    a.i(f"s_and_b32 s10, s{SW}, 1")
    a.i("s_lshl_b32 s11, s10, 12")
    a.i(f"s_lshr_b32 s12, s{SW}, 1")
    a.i("s_lshl_b32 s12, s12, 7")
    a.i("s_add_u32 s11, s11, s12")
    a.i(f"s_lshl_b32 s12, s{SH}, 13")
    a.i("s_add_u32 s11, s11, s12")
    a.i("s_cmp_eq_u32 s10, 1")
    a.i(f"s_cselect_b64 s[12:13], {s(s_hf,2)}, 0")
    a.i(f"v_mov_b32 v15, {hex(OOB)}")
    a.i("v_cndmask_b32_e64 v15, v14, v15, s[12:13]")
    for i in range(8):
        a.i(f"v_add_f32 v{R0+i}, v{R0+i}, v{R0+8+i}")
        a.i(f"v_add_f32 v{R0+16+i}, v{R0+16+i}, v{R0+24+i}")
        a.i(f"v_add_f32 v{R0+i}, v{R0+i}, v{R0+16+i}")
        a.i(f"buffer_atomic_add_f32 v{R0+i}, v{15 if i>=5 else 14}, {s(S_KV,4)}, s11 offen offset:{((i>>2)*8+(i&3))*256}")
    softmax_pm(a, PQ, E, OUT, T6, s_hf, s_L)
    a.i("s_lshl_b32 s10, s6, 4")
    a.i(f"s_add_u32 s10, s10, s{SH}")
    a.i("s_lshl_b32 s10, s10, 12")
    for fr in range(4):
        a.i(f"buffer_store_dwordx4 {v(OUT+4*fr,4)}, v12, {s(S_PQ,4)}, s10 offen offset:{fr*1024}")
    a.i("s_endpgm")
    return (L, 256, RED_L + 32768, 256, 16)


def k2(a):
    L = "k2_kernel"
    begin(a, L)
    load_args(a)
    a.i("s_cmp_lt_u32 s2, 256")
    a.i("s_cbranch_scc1 k2_go")
    a.i("s_endpgm")
    a.label("k2_go", pad=False)
    SW, SM, SJ, STT, SCG = 3, 4, 5, 6, 7
    wave_lane(a, SW, 1, 2)
    cluster_ids(a, SM, SJ)
    a.i(f"s_lshl_b32 s{STT}, s{SM}, 2")
    a.i(f"s_lshr_b32 s8, s{SJ}, 2")
    a.i(f"s_add_u32 s{STT}, s{STT}, s8")
    a.i(f"s_and_b32 s{SCG}, s{SJ}, 3")
    S_X, S_MOD, S_KV, S_PQ, S_WO, S_GU, S_Y, S_X1, S_ST = 44, 48, 52, 56, 60, 64, 68, 72, 76
    s_one = 80
    UB_L, ST_L = 32768, 32768 + 1024
    srd(a, S_MOD, P_WS, MOD_SZ, MOD)
    srd(a, S_GU, P_WS, WGUF_SZ, WGUF)
    srd(a, S_KV, P_WS, KV_SZ, KV)
    srd(a, S_PQ, P_WS, PHIQ_SZ, PHIQ)
    a.i("v_and_b32 v2, 31, v1")
    a.i("v_lshrrev_b32 v3, 5, v1")
    a.i("v_lshlrev_b32 v4, 4, v1")
    KVR, SJF, ACC, TMP = 128, 64, 16, 48
    A_WO, A_PQ, A_SW = 0, 128, 192
    a.i("v_lshlrev_b32 v5, 4, v3")
    a.i(f"v_add_u32 v6, {4*448*4}, v5")
    a.i(f"v_add_u32 v5, {3*448*4}, v5")
    a.i("v_cmp_eq_u32 vcc, 0, v2")
    a.i("v_cndmask_b32 v5, v5, v6, vcc")
    a.i(f"v_mov_b32 v6, {hex(OOB)}")
    a.i("v_cmp_gt_u32 vcc, 2, v2")
    a.i("v_cndmask_b32 v5, v6, v5, vcc")
    a.i(f"s_mul_i32 s8, s{SW}, {7*64}")
    a.i(f"s_mul_i32 s9, s2, {29*1024}")
    a.i(f"s_mul_i32 s10, s{SW}, {7*1024}")
    a.i("s_add_u32 s9, s9, s10")
    a.i("s_add_u32 s10, s9, 4096")
    for k in range(7):
        a.i(f"buffer_load_dwordx4 {v(SJF+8*k,4)}, v5, {s(S_MOD,4)}, s8 offen offset:{k*64}")
        a.i(f"buffer_load_dwordx4 {v(SJF+8*k+4,4)}, v5, {s(S_MOD,4)}, s8 offen offset:{k*64+32}")
        a.i(f"buffer_load_dwordx4 {ag(A_SW+4*k,4)}, v4, {s(S_GU,4)}, s{9 if k<4 else 10} offen offset:{(k%4)*1024}")
    a.i("v_lshlrev_b32 v5, 8, v2")
    a.i("v_lshl_add_u32 v5, v3, 4, v5")
    a.i(f"s_lshl_b32 s8, s{STT}, 2")
    a.i(f"s_add_u32 s8, s8, s{SW}")
    a.i("s_lshl_b32 s8, s8, 14")
    a.i(f"s_lshl_b32 s9, s{SW}, 15")
    for hh in range(4):
        for ks in range(4):
            a.i(f"buffer_load_dwordx4 {ag(A_PQ+hh*16+ks*4,4)}, v4, {s(S_PQ,4)}, s8 offen offset:{ks*1024}")
            for q in range(2):
                a.i(f"buffer_load_dwordx4 {v(KVR+hh*32+ks*8+q*4,4)}, v5, {s(S_KV,4)}, s9 offen offset:{ks*64+q*32}")
        if hh < 3:
            a.i("s_add_u32 s8, s8, 4096")
            a.i("s_add_u32 s9, s9, 8192")
    srd(a, S_WO, P_WS, WOF_SZ, WOF)
    srd(a, S_X, P_X, 2048 * 896)
    srd(a, S_Y, P_WS, Y_SZ, Y)
    srd(a, S_X1, P_WS, X1_SZ, X1)
    srd(a, S_ST, P_WS, STATS_SZ, STATS)
    a.i(f"s_mov_b32 s{s_one}, 0x3f803f80")
    for k in range(7):
        for p in range(4):
            a.i(f"v_cvt_pk_bf16_f32 v{SJF+8*k+p}, v{SJF+8*k+2*p}, v{SJF+8*k+2*p+1}")
        a.i(f"{MF} {v(ACC,16)}, {v(SJF+8*k,4)}, {ag(A_SW+4*k,4)}, {v(ACC,16) if k else 0}")
    a.i(f"s_lshl_b32 s8, s{SCG}, 2")
    a.i(f"s_add_u32 s8, s8, s{SW}")
    a.i("s_lshl_b32 s8, s8, 15")
    for ks in range(32):
        a.i(f"buffer_load_dwordx4 {ag(A_WO+4*ks,4)}, v4, {s(S_WO,4)}, s8 offen offset:{(ks%4)*1024}")
        if ks % 4 == 3 and ks < 31:
            a.i("s_add_u32 s8, s8, 4096")
    a.i(f"s_lshl_b32 s8, s{SW}, 8")
    a.i("v_lshlrev_b32 v6, 3, v2")
    a.i(f"v_add_u32 v7, {UB_L}, v6")
    a.i("v_add_u32 v6, s8, v7")
    a.i("s_mov_b32 exec_hi, 0")
    a.i(f"ds_write_b64 v6, {v(ACC,2)}")
    a.i("s_mov_b32 exec_hi, -1")
    XR, GA, G2 = 64, 72, 88
    a.i(f"s_mul_i32 s8, s{SCG}, 224")
    a.i(f"s_lshl_b32 s9, s{SW}, 6")
    a.i("s_add_u32 s8, s8, s9")
    a.i(f"s_mul_i32 s11, s{STT}, {32*896}")
    a.i("s_add_u32 s11, s11, s8")
    a.i("v_mul_u32_u24 v8, 896, v2")
    a.i("v_lshl_add_u32 v9, v3, 3, v8")
    for g in range(4):
        a.i(f"buffer_load_dwordx2 {v(XR+2*g,2)}, v9, {s(S_X,4)}, s11 offen offset:{g*16}")
    a.i("s_lshl_b32 s8, s8, 1")
    a.i(f"s_add_u32 s9, s8, {2*448*4}")
    a.i(f"s_add_u32 s10, s8, {4*448*4}")
    a.i("v_lshlrev_b32 v9, 4, v3")
    for g in range(4):
        a.i(f"buffer_load_dwordx4 {v(GA+4*g,4)}, v9, {s(S_MOD,4)}, s9 offen offset:{g*32}")
        a.i(f"buffer_load_dwordx4 {v(G2+4*g,4)}, v9, {s(S_MOD,4)}, s10 offen offset:{g*32}")
    a.i(f"s_lshl_b32 s8, s{SW}, 13")
    a.i("v_add_u32 v10, s8, v4")
    accs = [16, 32]
    for hh in range(4):
        acc = accs[hh & 1]
        kb = KVR + hh * 32
        for ks in range(4):
            for p in range(4):
                a.i(f"v_cvt_pk_bf16_f32 v{kb+ks*8+p}, v{kb+ks*8+2*p}, v{kb+ks*8+2*p+1}")
            a.i(f"{MF} {v(acc,16)}, {v(kb+ks*8,4)}, {ag(A_PQ+hh*16+ks*4,4)}, {v(acc,16) if ks else 0}")
        a.i(f"v_mov_b32 v11, v{acc+12}")
        a.i(f"v_mov_b32 v12, v{acc+12}")
        a.i("v_permlane32_swap_b32 v11, v12")
        a.i(f"v_add_f32 v12, {f2u(1e-6)}, v12")
        a.i("v_rcp_f32 v12, v12")
        for r in range(16):
            a.i(f"v_mul_f32 v{acc+r}, v{acc+r}, v12")
        for p in range(8):
            a.i(f"v_cvt_pk_bf16_f32 v{TMP+p}, v{acc+2*p}, v{acc+2*p+1}")
        a.i(f"ds_write_b128 v10, {v(TMP,4)} offset:{hh*2048}")
        a.i(f"ds_write_b128 v10, {v(TMP+4,4)} offset:{hh*2048+1024}")
    a.barrier()
    a.i(f"s_cmp_lt_u32 s2, 112")
    a.i(f"s_cselect_b32 s8, s{SW}, 1")
    a.i("s_cmp_eq_u32 s8, 0")
    a.i("s_cbranch_scc0 k2_noside")
    save = (list(a.vm), list(a.lg))
    for k in range(4):
        a.i(f"ds_read_b64 {v(112+2*k,2)}, v7 offset:{k*256}")
    for c_ in range(2):
        a.i(f"v_add_f32 v{112+c_}, v{112+c_}, v{114+c_}")
        a.i(f"v_add_f32 v{116+c_}, v{116+c_}, v{118+c_}")
        a.i(f"v_add_f32 v{112+c_}, v{112+c_}, v{116+c_}")
    a.i("v_cvt_pk_bf16_f32 v114, v112, v113")
    a.i("v_lshlrev_b32 v115, 16, v114")
    a.i("v_and_b32 v116, 0xffff0000, v114")
    a.i("v_sub_f32 v115, v112, v115")
    a.i("v_sub_f32 v116, v113, v116")
    a.i("v_cvt_pk_bf16_f32 v115, v115, v116")
    a.i("v_and_b32 v120, 0xffff, v114")
    a.i("v_lshl_or_b32 v120, v115, 16, v120")
    a.i("v_mov_b32 v121, v114")
    a.i("v_lshrrev_b32 v122, 16, v115")
    a.i("v_and_b32 v116, 0xffff0000, v114")
    a.i("v_or_b32 v122, v122, v116")
    a.i("v_mov_b32 v123, 0")
    a.i("v_cmp_eq_u32 vcc, 0, v3")
    for r in range(120, 123):
        a.i(f"v_cndmask_b32 v{r}, 0, v{r}, vcc")
    a.i(f"s_mul_i32 s8, s2, {29*1024}")
    a.i(f"s_add_u32 s8, s8, {28*1024}")
    a.i(f"buffer_store_dwordx4 v[120:123], v4, {s(S_GU,4)}, s8 offen")
    a.label("k2_noside", pad=False)
    a.vm, a.lg = save[0], []
    OB = 128
    acc = 16
    for ks in range(8):
        a.i(f"ds_read_b128 {v(OB+4*ks,4)}, v4 offset:{ks*1024}")
    for ks in range(32):
        a.i(f"{MF} {v(acc,16)}, {ag(A_WO+4*ks,4)}, {v(OB+4*(ks%8),4)}, {v(acc,16) if ks else 0}")
        if ks + 8 < 32:
            a.i(f"ds_read_b128 {v(OB+4*(ks%8),4)}, v4 offset:{(ks+8)*1024}")
    a.wait(vm=0)
    PK, YP, U = 32, 40, 48
    S1, S2 = 12, 13
    a.i(f"v_mov_b32 v{S1}, 0")
    a.i(f"v_mov_b32 v{S2}, 0")
    a.i(f"s_mul_i32 s8, s{STT}, 28")
    a.i(f"s_mul_i32 s9, s{SCG}, 7")
    a.i("s_add_u32 s8, s8, s9")
    a.i(f"s_lshl_b32 s9, s{SW}, 1")
    a.i("s_add_u32 s8, s8, s9")
    a.i("s_lshl_b32 s8, s8, 10")
    a.i("v_lshl_add_u32 v9, v3, 4, v8")
    for blk in range(2):
        if blk == 1:
            a.i(f"s_cmp_eq_u32 s{SW}, 3")
            a.i("s_cbranch_scc1 k2_half")
        for p in range(4):
            r = blk * 8 + 2 * p
            x = XR + blk * 4 + p
            a.i(f"v_lshlrev_b32 v{U}, 16, v{x}")
            a.i(f"v_and_b32 v{U+1}, 0xffff0000, v{x}")
            a.i(f"v_fmac_f32 v{U}, v{GA+r}, v{acc+r}")
            a.i(f"v_fmac_f32 v{U+1}, v{GA+r+1}, v{acc+r+1}")
            pk = PK + blk * 4 + p
            a.i(f"v_cvt_pk_bf16_f32 v{pk}, v{U}, v{U+1}")
            a.i(f"v_lshlrev_b32 v{U}, 16, v{pk}")
            a.i(f"v_and_b32 v{U+1}, 0xffff0000, v{pk}")
            a.i(f"v_dot2_f32_bf16 v{S1}, v{pk}, s{s_one}, v{S1}")
            a.i(f"v_dot2_f32_bf16 v{S2}, v{pk}, v{pk}, v{S2}")
            a.i(f"v_mul_f32 v{U}, v{U}, v{G2+r}")
            a.i(f"v_mul_f32 v{U+1}, v{U+1}, v{G2+r+1}")
            a.i(f"v_cvt_pk_bf16_f32 v{YP+blk*4+p}, v{U}, v{U+1}")
        a.i(f"buffer_store_dwordx4 {v(YP+blk*4,4)}, v4, {s(S_Y,4)}, s8 offen offset:{blk*1024}")
        b = PK + blk * 4
        a.i(f"v_permlane32_swap_b32 v{b}, v{b+2}")
        a.i(f"v_permlane32_swap_b32 v{b+1}, v{b+3}")
        a.i(f"buffer_store_dwordx4 {v(b,4)}, v9, {s(S_X1,4)}, s11 offen offset:{blk*32}")
    a.label("k2_half")
    allsum32(a, S1, 14)
    allsum32(a, S2, 14)
    a.i(f"s_lshl_b32 s8, s{SW}, 8")
    a.i(f"v_add_u32 v7, {ST_L-UB_L}, v7")
    a.i("v_add_u32 v6, s8, v7")
    a.i(f"ds_write_b64 v6, {v(S1,2)}")
    a.barrier()
    a.i(f"s_cmp_eq_u32 s{SW}, 0")
    a.i("s_cbranch_scc0 k2_end")
    for k in range(4):
        a.i(f"ds_read_b64 {v(112+2*k,2)}, v7 offset:{k*256}")
    for c_ in range(2):
        a.i(f"v_add_f32 v{112+c_}, v{112+c_}, v{114+c_}")
        a.i(f"v_add_f32 v{116+c_}, v{116+c_}, v{118+c_}")
        a.i(f"v_add_f32 v{112+c_}, v{112+c_}, v{116+c_}")
    a.i(f"s_lshl_b32 s8, s{STT}, 10")
    a.i(f"s_lshl_b32 s9, s{SCG}, 3")
    a.i("s_add_u32 s8, s8, s9")
    a.i("v_lshlrev_b32 v6, 5, v2")
    a.i(f"buffer_store_dwordx2 v[112:113], v6, {s(S_ST,4)}, s8 offen")
    a.label("k2_end", pad=False)
    a.i("s_endpgm")
    return (L, 256, 32768 + 2048, 256, 224)


GC1 = 2.0 * 0.7978845608028654 * LOG2E
GC2 = GC1 * 0.044715


def k3(a):
    L = "k3_kernel"
    begin(a, L)
    load_args(a)
    a.i("s_cmp_lt_u32 s2, 224")
    a.i("s_cbranch_scc1 k3_go")
    a.i("s_endpgm")
    a.label("k3_go", pad=False)
    SW, SM, SJ = 3, 4, 5
    wave_lane(a, SW, 1, 2)
    cluster_ids(a, SM, SJ)
    S_Y, S_GU, S_ST, S_ACT = 44, 48, 52, 56
    srd(a, S_Y, P_WS, Y_SZ, Y)
    srd(a, S_GU, P_WS, WGUF_SZ, WGUF)
    srd(a, S_ST, P_WS, STATS_SZ, STATS)
    srd(a, S_ACT, P_WS, ACT_SZ, ACT)
    a.i("v_and_b32 v2, 31, v1")
    a.i("v_lshrrev_b32 v3, 5, v1")
    a.i("v_lshlrev_b32 v4, 4, v1")
    ST0, SF, CF, YB, ACC, TMP = 192, 224, 240, 96, 16, 128
    a.i("v_lshlrev_b32 v5, 5, v2")
    a.i(f"s_lshl_b32 s6, s{SM}, 12")
    for tt in range(4):
        for q in range(2):
            a.i(f"buffer_load_dwordx4 {v(ST0+tt*8+q*4,4)}, v5, {s(S_ST,4)}, s6 offen offset:{tt*1024+q*16}")
    a.i(f"s_mul_i32 s7, s{SW}, {7*1024}")
    a.i(f"s_mul_i32 s8, s{SM}, {112*1024}")
    a.i("s_add_u32 s8, s8, s7")
    ytag = {}

    def ydma(tt):
        for g in range(2):
            a.i(f"s_add_u32 m0, s7, {tt*28*1024 + g*4096}")
            a.i(f"s_add_u32 s9, s8, {tt*28*1024 + g*4096}")
            for k in range(4 if g == 0 else 3):
                ytag[tt] = a.i(f"buffer_load_dwordx4 v4, {s(S_Y,4)}, s9 offen offset:{k*1024} lds")

    ydma(0)
    a.i(f"s_lshl_b32 s10, s{SJ}, 2")
    a.i(f"s_add_u32 s10, s10, s{SW}")
    a.i(f"s_mul_i32 s10, s10, {58*1024}")
    a.i(f"s_add_u32 s11, s10, {29*1024}")
    for ks in range(29):
        for T in range(2):
            a.i(f"buffer_load_dwordx4 {ag(T*116+4*ks,4)}, v4, {s(S_GU,4)}, s{10+T} offen offset:{(ks%4)*1024}")
        if ks % 4 == 3:
            a.i("s_add_u32 s10, s10, 4096")
            a.i("s_add_u32 s11, s11, 4096")
        if ks == 13:
            ydma(1)
    ydma(2)
    ydma(3)
    a.i("v_cmp_eq_u32 vcc, 0, v3")
    for tt in range(4):
        b = ST0 + tt * 8
        for c_ in range(2):
            a.i(f"v_add_f32 v{b+c_}, v{b+c_}, v{b+2+c_}")
            a.i(f"v_add_f32 v{b+4+c_}, v{b+4+c_}, v{b+6+c_}")
            a.i(f"v_add_f32 v{b+c_}, v{b+c_}, v{b+4+c_}")
        a.i(f"v_mul_f32 v{b}, {f2u(-1/448)}, v{b}")
        a.i(f"v_mul_f32 v{b+1}, {f2u(1/448)}, v{b+1}")
        a.i(f"v_fma_f32 v{b+1}, -v{b}, v{b}, v{b+1}")
        a.i(f"v_max_f32 v{b+1}, 0, v{b+1}")
        a.i(f"v_add_f32 v{b+1}, {f2u(1e-5)}, v{b+1}")
        c0 = CF + tt * 3
        a.i(f"v_mov_b32 v{c0+2}, v{b+1}")
        a.i(f"v_rsq_f32 v{b+2}, v{b+1}")
        a.i(f"v_mul_f32 v{b+1}, v{b+1}, v{b+2}")
        a.i(f"v_mul_f32 v{c0}, {f2u(-GC1)}, v{b+2}")
        a.i(f"v_mul_f32 v{b+3}, v{b+2}, v{b+2}")
        a.i(f"v_mul_f32 v{b+3}, v{b+3}, v{b+2}")
        a.i(f"v_mul_f32 v{c0+1}, {f2u(-GC2)}, v{b+3}")
        a.i(f"v_cvt_pk_bf16_f32 v{b+2}, v{b}, v{b+1}")
        a.i(f"v_lshlrev_b32 v{b+3}, 16, v{b+2}")
        a.i(f"v_and_b32 v{b+4}, 0xffff0000, v{b+2}")
        a.i(f"v_sub_f32 v{b+5}, v{b}, v{b+3}")
        a.i(f"v_sub_f32 v{b+6}, v{b+1}, v{b+4}")
        a.i(f"v_cvt_pk_bf16_f32 v{b+5}, v{b+5}, v{b+6}")
        f = SF + tt * 4
        a.i(f"v_lshrrev_b32 v{f}, 16, v{b+3}")
        a.i(f"v_or_b32 v{f}, v{f}, v{b+3}")
        a.i(f"v_and_b32 v{f+1}, 0xffff, v{b+5}")
        a.i(f"v_or_b32 v{f+1}, v{f+1}, v{b+4}")
        a.i(f"v_lshrrev_b32 v{f+2}, 16, v{b+4}")
        a.i(f"v_and_b32 v{b+5}, 0xffff0000, v{b+5}")
        a.i(f"v_or_b32 v{f+2}, v{f+2}, v{b+5}")
        a.i(f"v_mov_b32 v{f+3}, 0")
        for r in range(3):
            a.i(f"v_cndmask_b32 v{f+r}, 0, v{f+r}, vcc")
    a.i(f"s_mul_i32 s12, s{SM}, {4*112}")
    a.i(f"s_lshl_b32 s13, s{SJ}, 3")
    a.i("s_add_u32 s12, s12, s13")
    a.i(f"s_lshl_b32 s13, s{SW}, 1")
    a.i("s_add_u32 s12, s12, s13")
    a.i("s_lshl_b32 s12, s12, 10")
    a.i(f"v_add_u32 v6, {56*1024}, v4")

    def epi(tt):
        out = []
        c0 = CF + tt * 3
        for T in range(2):
            acc = ACC + (tt & 1) * 32 + T * 16
            t = TMP + T * 16
            for j in range(8):
                out.append(f"v_mul_f32 v{t+j}, v{acc+j}, v{acc+j}")
            for j in range(8):
                out.append(f"v_fma_f32 v{t+j}, v{t+j}, v{c0+1}, v{c0}")
            for j in range(8):
                out.append(f"v_mul_f32 v{t+j}, v{t+j}, v{acc+j}")
            for j in range(8):
                out.append(f"v_exp_f32 v{t+j}, v{t+j}")
                out.append(f"v_mul_f32 v{t+8+j}, v{acc+j}, v{acc+8+j}")
            for j in range(8):
                out.append(f"v_fma_f32 v{t+j}, v{t+j}, v{c0+2}, v{c0+2}")
            for j in range(8):
                out.append(f"v_rcp_f32 v{t+j}, v{t+j}")
            for j in range(8):
                out.append(f"v_mul_f32 v{t+j}, v{t+j}, v{t+8+j}")
            for p in range(4):
                out.append(f"v_cvt_pk_bf16_f32 v{t+8+p}, v{t+2*p}, v{t+2*p+1}")
            out.append(f"buffer_store_dwordx4 {v(t+8,4)}, v4, {s(S_ACT,4)}, s13 offen offset:{T*1024}")
        return [f"s_add_u32 s13, s12, {tt*112*1024}"] + out

    NB = 6

    def yrd(tt, ks):
        i = tt * 28 + ks
        base, off = (4, i * 1024) if i < 56 else (6, (i - 56) * 1024)
        a.i(f"ds_read_b128 {v(YB+4*((tt*28+ks)%NB),4)}, v{base} offset:{off}")

    for tt in range(4):
        a.wait_vm_id(ytag[tt])
        a.i("s_barrier")
        for ks in range(NB - 1):
            yrd(tt, ks)
        ep = epi(tt - 1) if tt else []
        per = -(-len(ep) // 54) if ep else 0
        for ks in range(29):
            if ks + NB - 1 < 28:
                yrd(tt, ks + NB - 1)
            B = v(YB + 4 * ((tt * 28 + ks) % NB), 4) if ks < 28 else v(SF + tt * 4, 4)
            for T in range(2):
                acc = ACC + (tt & 1) * 32 + T * 16
                a.i(f"{MF} {v(acc,16)}, {ag(T*116+4*ks,4)}, {B}, {v(acc,16) if ks else 0}")
                if ks >= 1:
                    for _ in range(per):
                        if ep:
                            a.i(ep.pop(0))
        while ep:
            a.i(ep.pop(0))
    for t in epi(3):
        a.i(t)
    a.i("s_endpgm")
    return (L, 224, 112 * 1024, 256, 232)


def k4(a):
    L = "k4_kernel"
    begin(a, L)
    load_args(a)
    a.i("s_cmp_lt_u32 s2, 224")
    a.i("s_cbranch_scc1 k4_go")
    a.i("s_endpgm")
    a.label("k4_go", pad=False)
    SW, SM, SJ, STH, SNG = 3, 4, 5, 6, 7
    wave_lane(a, SW, 1, 2)
    cluster_ids(a, SM, SJ)
    a.i(f"s_cmp_ge_u32 s{SJ}, 7")
    a.i(f"s_cselect_b32 s{STH}, 1, 0")
    a.i(f"s_mul_i32 s8, s{STH}, 7")
    a.i(f"s_sub_u32 s{SNG}, s{SJ}, s8")
    S_ACT, S_WD, S_X1, S_MOD, S_OUT = 44, 48, 52, 56, 60
    srd(a, S_ACT, P_WS, ACT_SZ, ACT)
    srd(a, S_WD, P_WS, WDF_SZ, WDF)
    a.i("v_and_b32 v2, 31, v1")
    a.i("v_lshrrev_b32 v3, 5, v1")
    a.i("v_lshlrev_b32 v4, 4, v1")
    ACC, AB, NR = 16, 96, 16
    a.i(f"s_lshl_b32 s8, s{SM}, 1")
    a.i(f"s_add_u32 s8, s8, s{STH}")
    a.i(f"s_mul_i32 s9, s{SW}, {28*1024}")
    a.i(f"s_mul_i32 s10, s8, {2*112*1024}")
    a.i("s_add_u32 s10, s10, s9")
    a.i(f"s_add_u32 s11, s10, {112*1024}")
    a.i(f"s_mul_i32 s12, s{SNG}, {2*112*1024}")
    a.i("s_add_u32 s12, s12, s9")
    a.i(f"s_add_u32 s13, s12, {112*1024}")

    def ld(ks):
        o = (ks % 4) * 1024
        for T in range(2):
            a.i(f"buffer_load_dwordx4 {ag(T*112+4*ks,4)}, v4, {s(S_WD,4)}, s{12+T} offen offset:{o}")
        for t in range(2):
            a.i(f"buffer_load_dwordx4 {v(AB+(ks%NR)*8+4*t,4)}, v4, {s(S_ACT,4)}, s{10+t} offen offset:{o}")
        if ks % 4 == 3:
            for r in range(10, 14):
                a.i(f"s_add_u32 s{r}, s{r}, 4096")

    PRE = 15
    for ks in range(PRE):
        ld(ks)
    srd(a, S_X1, P_WS, X1_SZ, X1)
    srd(a, S_MOD, P_WS, MOD_SZ, MOD)
    srd(a, S_OUT, P_OUT, 2048 * 896)
    STR = 272
    a.i(f"v_mul_u32_u24 v5, {STR}, v2")
    a.i("v_lshl_add_u32 v5, v3, 4, v5")
    a.i(f"s_mul_i32 s14, s{SW}, {64*STR}")
    a.i("v_add_u32 v5, s14, v5")
    a.i("v_lshrrev_b32 v6, 3, v0")
    a.i("v_and_b32 v7, 7, v0")
    a.i(f"v_mul_u32_u24 v8, {STR}, v6")
    a.i("v_lshl_add_u32 v8, v7, 5, v8")
    a.i("v_mul_u32_u24 v9, 896, v6")
    a.i("v_lshl_add_u32 v9, v7, 4, v9")
    a.i("v_lshlrev_b32 v10, 5, v7")
    a.i(f"s_mul_i32 s14, s8, {64*896}")
    a.i(f"s_lshl_b32 s15, s{SNG}, 7")
    a.i("s_add_u32 s14, s14, s15")
    a.i(f"s_add_u32 s42, s14, {32*896}")
    a.i("s_lshl_b32 s15, s15, 1")
    a.i(f"s_add_u32 s15, s15, {5*448*4}")
    XR, GB = 224, 232
    for ks in range(28):
        for T in range(2):
            for t in range(2):
                acc = ACC + (T * 2 + t) * 16
                a.i(f"{MF} {v(acc,16)}, {ag(T*112+4*ks,4)}, {v(AB+(ks%NR)*8+4*t,4)}, {v(acc,16) if ks else 0}")
        if ks + PRE < 28:
            ld(ks + PRE)
        if ks == 14:
            a.i(f"buffer_load_dwordx4 {v(XR,4)}, v9, {s(S_X1,4)}, s14 offen")
            a.i(f"buffer_load_dwordx4 {v(XR+4,4)}, v9, {s(S_X1,4)}, s42 offen")
            a.i(f"buffer_load_dwordx4 {v(GB,4)}, v10, {s(S_MOD,4)}, s15 offen")
            a.i(f"buffer_load_dwordx4 {v(GB+4,4)}, v10, {s(S_MOD,4)}, s15 offen offset:16")
    for T in range(2):
        for t in range(2):
            acc = ACC + (T * 2 + t) * 16
            for g in range(4):
                a.i(f"ds_write_b128 v5, {v(acc+4*g,4)} offset:{t*32*STR + T*128 + g*32}")
    a.barrier()
    R = 96
    for p in range(2):
        for w in range(4):
            for q in range(2):
                a.i(f"ds_read_b128 {v(R+p*32+w*8+q*4,4)}, v8 offset:{w*64*STR + p*32*STR + q*16}")
    for p in range(2):
        b = R + p * 32
        for k in range(8):
            a.i(f"v_add_f32 v{b+k}, v{b+k}, v{b+8+k}")
            a.i(f"v_add_f32 v{b+16+k}, v{b+16+k}, v{b+24+k}")
            a.i(f"v_add_f32 v{b+k}, v{b+k}, v{b+16+k}")
        for q in range(4):
            x = XR + p * 4 + q
            a.i(f"v_lshlrev_b32 v{b+8}, 16, v{x}")
            a.i(f"v_and_b32 v{b+9}, 0xffff0000, v{x}")
            a.i(f"v_fmac_f32 v{b+8}, v{GB+2*q}, v{b+2*q}")
            a.i(f"v_fmac_f32 v{b+9}, v{GB+2*q+1}, v{b+2*q+1}")
            a.i(f"v_cvt_pk_bf16_f32 v{b+12+q}, v{b+8}, v{b+9}")
        a.i(f"buffer_store_dwordx4 {v(b+12,4)}, v9, {s(S_OUT,4)}, s{14 if p==0 else 42} offen")
    a.i("s_endpgm")
    return (L, 224, 4 * 64 * STR, 256, 224)


def main(out):
    hdr = open(f"cdna_kernels/{NAME}.s.ref").read().split("; Override")[0]
    a = Asm()
    ks = [k(a) for k in (k0, k1, k2, k3, k4)]
    t = hdr
    for (L, g, lds, nv, na) in ks:
        t += f"; @launch kernel={L} grid=({g},1,1) block=(256,1,1) lds={lds}\n"
    t += '.amdgcn_target "amdgcn-amd-amdhsa--gfx950"\n.text\n'
    for k in ks:
        t += f".globl {k[0]}\n"
    t += a.text()
    t += '.section .rodata,"a"\n'
    for (L, g, lds, nv, na) in ks:
        t += f""".p2align 6
.amdhsa_kernel {L}
  .amdhsa_next_free_vgpr {nv+na}
  .amdhsa_next_free_sgpr 102
  .amdhsa_accum_offset {nv}
  .amdhsa_group_segment_fixed_size 0
  .amdhsa_kernarg_size 104
  .amdhsa_user_sgpr_count 2
  .amdhsa_user_sgpr_kernarg_segment_ptr 1
  .amdhsa_system_sgpr_workgroup_id_x 1
.end_amdhsa_kernel
"""
    open(out, "w").write(t)
    print("instructions:", a.count, "nop states added:", a.nops_added, "bytes:", len(t))


if __name__ == "__main__":
    main(sys.argv[1] if len(sys.argv) > 1 else f"cdna_kernels/{NAME}.s")
```

```python
import re

TRANS = ("v_exp_f32", "v_log_f32", "v_rcp_f32", "v_rsq_f32", "v_sqrt_f32", "v_sin_f32", "v_cos_f32")


def parse_reg(tok):
    tok = tok.strip()
    neg = tok.lstrip("-|").rstrip("|")
    if neg.startswith("abs(") or neg.startswith("neg("):
        neg = neg[4:-1]
    m = re.fullmatch(r"([vas])(\d+)", neg)
    if m:
        return {(m.group(1), int(m.group(2)))}
    m = re.fullmatch(r"([vas])\[(\d+):(\d+)\]", neg)
    if m:
        return {(m.group(1), i) for i in range(int(m.group(2)), int(m.group(3)) + 1)}
    if neg == "vcc":
        return {("s", 106), ("s", 107)}
    if neg == "vcc_lo":
        return {("s", 106)}
    if neg == "vcc_hi":
        return {("s", 107)}
    if neg == "exec":
        return {("s", 126), ("s", 127)}
    if neg == "exec_lo":
        return {("s", 126)}
    if neg == "exec_hi":
        return {("s", 127)}
    if neg == "m0":
        return {("s", 124)}
    return set()


EXEC = {("s", 126), ("s", 127)}
VCC = {("s", 106), ("s", 107)}
M0 = {("s", 124)}


class Ins:
    __slots__ = ("text", "mn", "ops", "mods", "defs", "uses", "kind", "A", "B", "C", "passes", "states", "sdata")


def classify(text):
    t = text.split(";")[0].strip()
    sp = t.split(None, 1)
    mn = sp[0]
    rest = sp[1] if len(sp) > 1 else ""
    parts = [p.strip() for p in rest.split(",")] if rest else []
    mods = ""
    if parts:
        last = parts[-1].split(None, 1)
        parts[-1] = last[0]
        mods = last[1] if len(last) > 1 else ""
    ops = []
    for p in parts:
        ops.append(p)
    i = Ins()
    i.text, i.mn, i.ops, i.mods = text, mn, ops, mods
    if "op_sel" in rest or "neg_lo" in rest or "neg_hi" in rest or "quad_perm" in rest:
        r2 = re.sub(r"\b(op_sel|op_sel_hi|neg_lo|neg_hi|quad_perm):\[[^\]]*\]", "", rest)
        parts = [p.strip() for p in r2.split(",")]
        last = parts[-1].split(None, 1)
        parts[-1] = last[0]
        i.mods = rest
        i.ops = ops = parts
    R = [parse_reg(o) for o in ops]
    i.defs, i.uses, i.A, i.B, i.C, i.passes, i.states, i.sdata = set(), set(), set(), set(), set(), 0, 1, set()
    allr = set().union(*R) if R else set()
    if mn.startswith("v_mfma"):
        i.kind = "mfma"
        i.defs = R[0]
        i.A, i.B, i.C = R[1], R[2], R[3]
        i.uses = R[1] | R[2] | R[3]
        i.passes = 8 if "32x32x16" in mn else 4
    elif mn.startswith("v_"):
        i.kind = "valu"
        base = mn.replace("_e32", "").replace("_e64", "").replace("_dpp", "").replace("_sdwa", "")
        if base.startswith("v_cmpx"):
            i.defs = set(EXEC)
            i.uses = allr
        elif base.startswith("v_permlane") and "swap" in base:
            i.defs = R[0] | R[1]
            i.uses = R[0] | R[1]
        elif base in ("v_add_co_u32", "v_sub_co_u32", "v_addc_co_u32", "v_subb_co_u32"):
            i.defs = R[0] | R[1]
            i.uses = set().union(*R[2:])
        elif base == "v_nop":
            pass
        else:
            i.defs = R[0]
            i.uses = set().union(*R[1:]) if len(R) > 1 else set()
            if base.startswith(("v_fmac", "v_dot2c", "v_pk_fmac", "v_mac", "v_writelane")) or "row_" in i.mods or "quad_perm" in i.mods or "_dpp" in mn:
                i.uses |= R[0]
    elif mn.startswith("buffer_") or mn.startswith("global_"):
        i.kind = "vmem"
        lds = bool(re.search(r"\blds\b", i.mods)) or "_lds_" in mn
        if mn.startswith("buffer_load") and not lds:
            i.defs = R[0]
            i.uses = set().union(*R[1:])
        elif mn.startswith("global_load") and not lds:
            i.defs = R[0]
            i.uses = set().union(*R[1:])
        elif lds:
            i.uses = allr | M0
        elif "atomic" in mn and re.search(r"\bsc0\b", i.mods):
            if mn.startswith("buffer"):
                i.defs = R[0]
                i.uses = allr
            else:
                i.defs = R[0]
                i.uses = set().union(*R[1:])
        elif mn in ("buffer_inv", "buffer_wbl2"):
            pass
        else:
            i.uses = allr
            d = R[0] if mn.startswith("buffer") else R[1]
            if len(d) >= 3:
                i.sdata = d
    elif mn.startswith("ds_"):
        i.kind = "ds"
        if mn.startswith("ds_read") or "rtn" in mn or mn.startswith(("ds_bpermute", "ds_permute", "ds_swizzle")):
            i.defs = R[0]
            i.uses = set().union(*R[1:])
        else:
            i.uses = allr
    elif mn.startswith("s_"):
        i.kind = "salu"
        if mn.startswith(("s_load", "s_buffer_load")):
            i.kind = "smem"
            i.defs = R[0]
            i.uses = set().union(*R[1:])
        elif mn.startswith(("s_cmp", "s_bitcmp")):
            i.uses = allr
        elif mn in ("s_nop",):
            i.states = int(ops[0], 0) + 1
        elif mn.startswith(("s_waitcnt", "s_barrier", "s_branch", "s_cbranch", "s_setprio", "s_sleep", "s_endpgm", "s_setreg", "s_sethalt")):
            if mn.startswith("s_setreg"):
                i.uses = allr
        elif mn.startswith("s_memtime") or mn.startswith("s_memrealtime"):
            i.kind = "smem"
            i.defs = R[0]
        else:
            i.defs = R[0]
            i.uses = set().union(*R[1:])
            if "saveexec" in mn:
                i.defs |= EXEC
                i.uses |= EXEC
    else:
        raise ValueError("unknown instruction: " + text)
    return i


def is_trans(i):
    return i.mn.replace("_e32", "").replace("_e64", "") in TRANS


def vg(s):
    return {r for r in s if r[0] in "va"}


def sg(s):
    return {r for r in s if r[0] == "s"}


class Asm:
    def __init__(self):
        self.lines = []
        self.hist = []
        self.vm = []
        self.lg = []
        self.sm = []
        self.nid = 0
        self.nops_added = 0
        self.count = 0
        self.known = set()
        self.cur = None
        self.stack = []

    def raw(self, s):
        self.lines.append(s)

    def c(self, s):
        self.lines.append("    ; " + s)

    def reset_state(self):
        self.hist, self.vm, self.lg, self.sm = [], [], [], []

    def label(self, name, pad=True):
        self.lines.append(name + ":")
        if pad:
            self._emit(classify("s_nop 4"))

    def _need(self, n):
        need = 0
        dist = 0
        nv, ns = vg(n.uses), sg(n.uses)
        ndefv = vg(n.defs)
        ndpp = n.kind == "valu" and ("row_" in n.mods or "quad_perm" in n.mods or "_dpp" in n.mn)
        nperm = n.mn.startswith("v_permlane")
        nrl = n.mn.startswith(("v_readfirstlane", "v_readlane"))
        for p in reversed(self.hist):
            req = 0
            if p.kind == "valu":
                pv, ps = vg(p.defs), sg(p.defs)
                isdot = p.mn.startswith("v_dot")
                if n.kind == "mfma" and pv & nv:
                    req = max(req, 3 if isdot else 2)
                if isdot and (pv & (nv | ndefv)):
                    same = p.mn == n.mn
                    if same and len(n.ops) >= 3 and not (pv & (parse_reg(n.ops[1]) | parse_reg(n.ops[2]))):
                        pass
                    else:
                        req = max(req, 3)
                if ndpp and pv & nv:
                    req = max(req, 2)
                if nperm and pv & nv:
                    req = max(req, 2)
                if nrl and pv & nv:
                    req = max(req, 1)
                if is_trans(p) and n.kind in ("valu", "mfma") and pv & nv:
                    req = max(req, 1)
                if ("op_sel" in p.mods or "_sdwa" in p.mn or "dst_sel" in p.mods) and n.kind == "valu" and pv & (nv | ndefv):
                    req = max(req, 1)
                if ps:
                    if n.kind == "vmem" and ps & ns:
                        req = max(req, 5)
                    if n.kind == "valu" and ps & ns:
                        req = max(req, 4 if n.mn.startswith(("v_readlane", "v_writelane")) else 2)
                    if n.kind in ("salu", "smem") and ps & ns:
                        req = max(req, 1)
                    if ps & EXEC:
                        if ndpp:
                            req = max(req, 5)
                        if nrl or nperm or n.kind == "mfma":
                            req = max(req, 4)
            elif p.kind == "mfma":
                big = {4: 8, 8: 12}[p.passes]
                if n.kind == "mfma":
                    if p.defs & (n.A | n.B):
                        req = max(req, big)
                    if p.defs & n.C:
                        if not (p.defs == n.C and p.passes == n.passes):
                            req = max(req, big - 2)
                    elif p.defs & n.defs:
                        req = max(req, big)
                else:
                    if p.defs & (nv | ndefv):
                        req = max(req, big)
                    if n.kind == "valu" and p.C & ndefv:
                        req = max(req, {4: 3, 8: 7}[p.passes])
                    if n.kind in ("vmem", "ds") and p.C & ndefv:
                        req = max(req, {4: 3, 8: 7}[p.passes])
            elif p.kind in ("vmem",):
                if p.sdata and p.sdata & ndefv:
                    req = max(req, 2)
            elif p.kind == "salu":
                if (p.defs & M0) and (n.uses & M0) and n.kind in ("vmem", "ds"):
                    req = max(req, 1)
            if req > dist:
                need = max(need, req - dist)
            dist += p.states
            if dist >= 24:
                break
        return need

    def _emit(self, n):
        self.lines.append("    " + n.text)
        self.hist.append(n)
        if len(self.hist) > 200:
            self.hist = self.hist[-150:]
        self.count += 1

    def _waits(self, n):
        touch = n.uses | n.defs
        vmn = None
        for k in range(len(self.vm) - 1, -1, -1):
            if self.vm[k][1] & touch:
                vmn = len(self.vm) - 1 - k
                break
        lgn = None
        for k in range(len(self.lg) - 1, -1, -1):
            if self.lg[k][1] & touch:
                lgn = len(self.lg) - 1 - k
                break
        if any(d & touch for d in self.sm):
            lgn = 0
        if self.sm and lgn is not None:
            lgn = 0
        if vmn is not None or lgn is not None:
            self.wait(vm=vmn, lg=lgn)

    def _sure(self, lst):
        return sum(1 for e in lst if e[2] is None or e[2] in self.known)

    def wait(self, vm=None, lg=None):
        s = "s_waitcnt"
        did = False
        if vm is not None and vm < len(self.vm):
            keep = self.vm[len(self.vm) - vm:] if vm else []
            c = self._sure(keep)
            while c > 63:
                keep = keep[1:]
                c = self._sure(keep)
            s += " vmcnt(%d)" % c
            self.vm = keep
            did = True
        if lg is not None and (lg < len(self.lg) or self.sm):
            keep = self.lg[len(self.lg) - lg:] if lg else []
            if self.sm:
                keep = []
            c = self._sure(keep)
            while c > 15:
                keep = keep[1:]
                c = self._sure(keep)
            s += " lgkmcnt(%d)" % c
            self.lg = keep
            if c == 0:
                self.sm = []
                self.lg = []
            did = True
        if did:
            self._emit(classify(s))

    def begin_if(self, group):
        self.stack.append((group, list(self.vm), list(self.lg), list(self.sm), set(self.known), self.cur, list(self.hist)))
        self.known = set(self.known) | {group}
        self.cur = group
        self.hist_mark = len(self.lines)

    def _join(self, snap, now, group):
        ids = {e[0] for e in now}
        old = [e for e in snap if not (e[2] == group and e[0] not in ids)]
        oid = {e[0] for e in snap}
        return old + [e for e in now if e[0] not in oid]

    def end_if(self):
        group, vm, lg, sm, known, cur, hist = self.stack.pop()
        self.vm = self._join(vm, self.vm, group)
        self.lg = self._join(lg, self.lg, group)
        self.sm = sm + [d for d in self.sm if d not in sm]
        self.known, self.cur = known, cur
        import copy
        ids = {id(h) for h in hist}
        tail = []
        for h in self.hist:
            if id(h) not in ids:
                h2 = copy.copy(h)
                h2.states = 0
                tail.append(h2)
        self.hist = hist + tail

    def snapshot(self):
        return (list(self.vm), list(self.lg), list(self.sm), set(self.known), self.cur, list(self.hist))

    def restore(self, sn):
        self.vm, self.lg, self.sm, self.known, self.cur, self.hist = list(sn[0]), list(sn[1]), list(sn[2]), set(sn[3]), sn[4], list(sn[5])

    def merge(self, sa, sb, drop):
        def clean(l):
            for e in l:
                assert not (e[2] in drop and e[1]), "optional load outstanding at merge"
            return [e for e in l if e[2] not in drop]
        res = []
        for k in (0, 1):
            x, y = clean(sa[k]), clean(sb[k])
            if len(x) < len(y):
                x, y = y, x
            assert [e[1] for e in x[len(x) - len(y):]] == [e[1] for e in y], "merge mismatch"
            res.append(x)
        self.vm, self.lg = res
        self.sm = sa[2] + [d for d in sb[2] if d not in sa[2]]
        self.known = sa[3] & sb[3]
        self.cur = None
        import copy
        h = []
        for q in sa[5][-24:] + sb[5][-24:]:
            q2 = copy.copy(q)
            q2.states = 0
            h.append(q2)
        self.hist = h

    def force_wait(self, vm=None, lg=None):
        s = "s_waitcnt"
        if vm is not None:
            s += " vmcnt(%d)" % vm
            self.vm = self.vm[max(0, len(self.vm) - vm):] if vm else []
        if lg is not None:
            s += " lgkmcnt(%d)" % lg
            self.lg = self.lg[max(0, len(self.lg) - lg):] if lg else []
            if lg == 0:
                self.sm = []
        self._emit(classify(s))

    def wait_vm_id(self, tag):
        for k, e in enumerate(self.vm):
            if e[0] == tag:
                self.wait(vm=len(self.vm) - 1 - k)
                return

    def wait_lg_id(self, tag):
        for k, e in enumerate(self.lg):
            if e[0] == tag:
                self.wait(lg=len(self.lg) - 1 - k)
                return

    def i(self, text, opt=None):
        n = classify(text)
        grp = opt if opt is not None else self.cur
        self._waits(n)
        need = self._need(n)
        while need > 0:
            k = min(need, 16)
            self._emit(classify("s_nop %d" % (k - 1)))
            self.nops_added += k
            need -= k
        self._emit(n)
        self.nid += 1
        if n.kind == "vmem" and n.mn not in ():
            self.vm.append((self.nid, set(n.defs), grp))
            if len(self.vm) > 63:
                pass
        elif n.kind == "ds":
            self.lg.append((self.nid, set(n.defs), grp))
        elif n.kind == "smem":
            self.sm.append(set(n.defs))
        return self.nid

    def barrier(self, vm=None):
        self.wait(vm=vm, lg=0)
        self.i("s_barrier")

    def text(self):
        return "\n".join(self.lines) + "\n"


def v(a, n=1):
    return "v%d" % a if n == 1 else "v[%d:%d]" % (a, a + n - 1)


def ag(a, n=1):
    return "a%d" % a if n == 1 else "a[%d:%d]" % (a, a + n - 1)


def s(a, n=1):
    return "s%d" % a if n == 1 else "s[%d:%d]" % (a, a + n - 1)
```

```python
import struct
import sys
from asmlib import Asm, v, ag, s

NAME = "adaLN_cond__linear_kernel_hedgehog__geglu_ffn__prompt"

MOD, MOD_SZ = 0x0, 2688 * 4
KV, KV_SZ = 0x10000, 0x20000
STATS, STATS_SZ = 0x30000, 0x10000
PHIQ, PHIQ_SZ = 0x100000, 0x400000
Y, Y_SZ = 0x500000, 64 * 28 * 1024
X1, X1_SZ = 0x700000, 2048 * 896
ACT, ACT_SZ = 0x900000, 64 * 112 * 1024
WOF, WOF_SZ = 0x1000000, 512 * 1024
WGUF, WGUF_SZ = 0x1100000, 112 * 29 * 1024
WDF, WDF_SZ = 0x1500000, 14 * 112 * 1024

P_X, P_WQKV, P_WPHI, P_WO, P_BX, P_WG, P_WU, P_WD = 16, 18, 20, 22, 24, 26, 28, 30
P_C, P_WMOD, P_OUT, P_DBG, P_WS = 32, 34, 36, 38, 40
OOB = 0x7F000000
LOG2E = 1.4426950408889634


def f2u(x):
    return "0x%08x" % struct.unpack("<I", struct.pack("<f", x))[0]


def load_args(a):
    a.i("s_load_dwordx16 s[16:31], s[0:1], 0")
    a.i("s_load_dwordx8 s[32:39], s[0:1], 64")
    a.i("s_load_dwordx2 s[40:41], s[0:1], 96")


def srd(a, d, ptr, size, off=0):
    if off:
        a.i(f"s_add_u32 s{d}, s{ptr}, {hex(off)}")
        a.i(f"s_addc_u32 s{d+1}, s{ptr+1}, 0")
    else:
        a.i(f"s_mov_b32 s{d}, s{ptr}")
        a.i(f"s_mov_b32 s{d+1}, s{ptr+1}")
    a.i(f"s_mov_b32 s{d+2}, {hex(size)}")
    a.i(f"s_mov_b32 s{d+3}, 0x20000")


PROF = False
PROF_OFF = 0x8000000
ST_BASE = 82


def stamp(a, n):
    if PROF:
        a.i(f"s_memrealtime s[{ST_BASE+2*n}:{ST_BASE+2*n+1}]")
        a.nst = max(getattr(a, "nst", 0), n + 1)


def endk(a, kidx, nst, swave=3):
    if PROF:
        stamp(a, nst)
        a.force_wait(lg=0)
        for n in range(nst + 1):
            a.i(f"v_writelane_b32 v62, s{ST_BASE+2*n}, {n}")
        a.i(f"s_add_u32 s44, s{P_WS}, {hex(PROF_OFF + kidx*256*256)}")
        a.i(f"s_addc_u32 s45, s{P_WS+1}, 0")
        a.i(f"s_mov_b32 s46, {256*256}")
        a.i("s_mov_b32 s47, 0x20000")
        a.i("s_lshl_b32 s48, s2, 2")
        a.i(f"s_add_u32 s48, s48, s{swave}")
        a.i("s_lshl_b32 s48, s48, 6")
        a.i("v_and_b32 v63, 63, v0")
        a.i("v_lshlrev_b32 v63, 2, v63")
        a.i(f"s_mov_b64 exec, {(1 << (nst + 1)) - 1}")
        a.i("buffer_store_dword v62, v63, s[44:47], s48 offen")
    a.i("s_endpgm")


def begin(a, label):
    a.raw(".p2align 8")
    a.raw(f".type {label},@function")
    a.raw(f"{label}:")
    a.reset_state()
    stamp(a, 0)


def wave_lane(a, s_wave, v_lane, tmp):
    a.i(f"v_lshrrev_b32 v{tmp}, 6, v0")
    a.i(f"v_and_b32 v{v_lane}, 63, v0")
    a.i(f"v_readfirstlane_b32 s{s_wave}, v{tmp}")


def cluster_ids(a, s_m, s_j):
    a.i(f"s_and_b32 s{s_m}, s2, 7")
    a.i(f"s_lshl_b32 s{s_m}, s{s_m}, 1")
    a.i(f"s_bfe_u32 s{s_j}, s2, 0x10003")
    a.i(f"s_add_u32 s{s_m}, s{s_m}, s{s_j}")
    a.i(f"s_lshr_b32 s{s_j}, s2, 4")


def allsum32(a, r, t, op="v_add_f32"):
    a.i(f"v_mov_b32 v{t}, v{r}")
    a.i(f"v_permlane32_swap_b32 v{r}, v{t}")
    a.i(f"{op} v{r}, v{r}, v{t}")


def k0(a):
    L = "k0_kernel"
    begin(a, L)
    load_args(a)
    SW, LN = 3, 1
    wave_lane(a, SW, LN, 2)
    a.i("s_cmp_lt_u32 s2, 84")
    a.i("s_cbranch_scc1 k0_mod")
    a.i("s_cmp_lt_u32 s2, 182")
    a.i("s_cbranch_scc1 k0_wgu")
    a.i("s_cmp_lt_u32 s2, 231")
    a.i("s_cbranch_scc1 k0_wd")
    a.i("s_cmp_lt_u32 s2, 247")
    a.i("s_cbranch_scc1 k0_wo")
    a.i("s_cmp_lt_u32 s2, 255")
    a.i("s_cbranch_scc1 k0_zero")
    a.i("s_endpgm")

    pend = list(a.sm)

    def role(name):
        a.label(name)
        a.sm = list(pend)
        a.vm, a.lg = [], []
        if PROF:
            a.force_wait(lg=0)
        stamp(a, 1)

    role("k0_zero")
    srd(a, 44, P_WS, KV_SZ, KV)
    a.i("s_sub_u32 s4, s2, 247")
    a.i("s_lshl_b32 s4, s4, 14")
    a.i("v_lshlrev_b32 v2, 4, v0")
    for r in range(4, 8):
        a.i(f"v_mov_b32 v{r}, 0")
    for k in range(4):
        a.i(f"buffer_store_dwordx4 v[4:7], v2, s[44:47], s4 offen")
        if k < 3:
            a.i("s_add_u32 s4, s4, 4096")
    endk(a, 0, 2)

    role("k0_mod")
    srd(a, 44, P_WMOD, 448 * 5376)
    srd(a, 48, P_C, 896)
    srd(a, 52, P_WS, MOD_SZ, MOD)
    a.i("v_lshrrev_b32 v2, 2, v0")
    a.i("v_and_b32 v3, 3, v0")
    a.i("v_mul_u32_u24 v4, 5376, v2")
    a.i("v_lshl_add_u32 v4, v3, 4, v4")
    a.i("v_lshlrev_b32 v5, 1, v2")
    a.i("s_lshl_b32 s4, s2, 6")
    W0, C0, AC = 16, 44, 52
    for p in range(7):
        a.i(f"buffer_load_ushort v{C0+p}, v5, s[48:51], 0 offen offset:{p*128}")
    for p in range(7):
        a.i(f"buffer_load_dwordx4 {v(W0+4*p,4)}, v4, s[44:47], s4 offen")
        if p < 6:
            a.i(f"s_add_u32 s4, s4, {64*5376}")
    for p in range(7):
        c = C0 + p
        a.i(f"v_lshlrev_b32 v{c}, 16, v{c}")
        a.i(f"v_mul_f32 v6, {f2u(-LOG2E)}, v{c}")
        a.i("v_exp_f32 v6, v6")
        a.i("v_add_f32 v6, 1.0, v6")
        a.i("v_rcp_f32 v6, v6")
        a.i(f"v_mul_f32 v{c}, v{c}, v6")
        a.i(f"v_cvt_pk_bf16_f32 v{c}, v{c}, v{c}")
        a.i(f"v_lshlrev_b32 v{c}, 16, v{c}")
    for k in range(8):
        a.i(f"v_mov_b32 v{AC+k}, 0")
    for p in range(7):
        for q in range(4):
            w = W0 + 4 * p + q
            a.i(f"v_lshlrev_b32 v6, 16, v{w}")
            a.i(f"v_and_b32 v7, 0xffff0000, v{w}")
            a.i(f"v_fmac_f32 v{AC+2*q}, v{C0+p}, v6")
            a.i(f"v_fmac_f32 v{AC+2*q+1}, v{C0+p}, v7")
    for rot in (8, 4):
        for k in range(8):
            a.i(f"v_add_f32_dpp v{AC+k}, v{AC+k}, v{AC+k} row_ror:{rot} row_mask:0xf bank_mask:0xf")
    for op in ("v_permlane16_swap_b32", "v_permlane32_swap_b32"):
        for k in range(8):
            a.i(f"v_mov_b32 v{W0+k}, v{AC+k}")
        for k in range(8):
            a.i(f"{op} v{AC+k}, v{W0+k}")
        for k in range(8):
            a.i(f"v_add_f32 v{AC+k}, v{AC+k}, v{W0+k}")
    a.i("s_lshl_b32 s5, s3, 7")
    a.i("v_lshlrev_b32 v6, 5, v3")
    a.i("v_add_u32 v6, s5, v6")
    a.i(f"ds_write_b128 v6, {v(AC,4)}")
    a.i(f"ds_write_b128 v6, {v(AC+4,4)} offset:16")
    a.barrier()
    a.i("s_cmp_eq_u32 s3, 0")
    a.i("s_cbranch_scc0 k0_end")
    a.i("v_and_b32 v6, 31, v0")
    a.i("v_lshlrev_b32 v6, 2, v6")
    for k in range(4):
        a.i(f"ds_read_b32 v{8+k}, v6 offset:{k*128}")
    a.i("v_add_f32 v8, v8, v9")
    a.i("v_add_f32 v10, v10, v11")
    a.i("v_add_f32 v8, v8, v10")
    a.i("v_cvt_pk_bf16_f32 v8, v8, v8")
    a.i("v_lshlrev_b32 v8, 16, v8")
    a.i("s_mov_b32 s6, 0")
    a.i("s_sub_u32 s7, s2, 14")
    a.i("s_cmp_lt_u32 s7, 14")
    a.i("s_cselect_b32 s6, 1.0, s6")
    a.i("s_sub_u32 s7, s2, 56")
    a.i("s_cmp_lt_u32 s7, 14")
    a.i("s_cselect_b32 s6, 1.0, s6")
    a.i("v_add_f32 v8, s6, v8")
    a.i("v_cvt_pk_bf16_f32 v8, v8, v8")
    a.i("v_lshlrev_b32 v8, 16, v8")
    a.i("s_lshl_b32 s4, s2, 7")
    a.i("buffer_store_dword v8, v6, s[52:55], s4 offen")
    a.label("k0_end", pad=False)
    endk(a, 0, 2)

    def tr_addr(gu):
        a.i("v_bfe_u32 v8, v1, 2, 2")
        a.i("v_lshrrev_b32 v9, 5, v1")
        a.i("v_lshl_add_u32 v8, v9, 2, v8")
        a.i("v_lshlrev_b32 v8, 6, v8")
        a.i("v_and_b32 v9, 3, v1")
        a.i("v_lshl_add_u32 v8, v9, 3, v8")
        a.i("v_bfe_u32 v9, v1, 4, 1")
        a.i(f"v_lshl_add_u32 v8, v9, {10 if gu else 5}, v8")
        a.i("s_lshl_b32 s8, s3, 13")
        a.i("v_add_u32 v8, s8, v8")
        a.i("v_lshlrev_b32 v10, 4, v1")

    def src_off(rowbytes):
        a.i("v_lshrrev_b32 v4, 2, v1")
        a.i(f"v_mul_u32_u24 v4, {rowbytes}, v4")
        a.i("v_and_b32 v5, 3, v1")
        a.i("v_lshl_add_u32 v4, v5, 4, v4")

    def finish(descr):
        for n, (tag, off, sreg, imm) in enumerate(descr):
            a.wait_vm_id(tag)
            r = 16 + 4 * n
            a.i(f"ds_read_b64_tr_b16 {v(r,2)}, v8 offset:{off}")
            a.i(f"ds_read_b64_tr_b16 {v(r+2,2)}, v8 offset:{off+512}")
        for n, (tag, off, sreg, imm) in enumerate(descr):
            r = 16 + 4 * n
            a.i(f"buffer_store_dwordx4 {v(r,4)}, v10, s[56:59], s{sreg} offen offset:{imm}")
        endk(a, 0, 2)

    role("k0_wgu")
    srd(a, 44, P_WG, 448 * 3584)
    srd(a, 48, P_WU, 448 * 3584)
    srd(a, 56, P_WS, WGUF_SZ, WGUF)
    a.i("s_sub_u32 s4, s2, 84")
    a.i("s_lshl_b32 s4, s4, 2")
    a.i("s_add_u32 s4, s4, s3")
    assert all((w * 9363) >> 16 == w // 7 for w in range(392))
    a.i("s_mul_i32 s5, s4, 9363")
    a.i("s_lshr_b32 s5, s5, 16")
    a.i("s_mul_i32 s6, s5, 7")
    a.i("s_sub_u32 s6, s4, s6")
    src_off(3584)
    tr_addr(True)
    a.i(f"s_mul_i32 s7, s6, {4*16*3584}")
    a.i("s_lshl_b32 s9, s5, 6")
    a.i("s_add_u32 s7, s7, s9")
    a.i("s_mov_b32 m0, s8")
    tags = []
    for i in range(4):
        t0 = a.i("buffer_load_dwordx4 v4, s[44:47], s7 offen lds")
        a.i("s_add_u32 m0, m0, 1024")
        t1 = a.i("buffer_load_dwordx4 v4, s[48:51], s7 offen lds")
        tags.append(t1)
        if i < 3:
            a.i("s_add_u32 m0, m0, 1024")
            a.i(f"s_add_u32 s7, s7, {16*3584}")
    a.i(f"s_mul_i32 s10, s5, {58*1024}")
    a.i("s_lshl_b32 s9, s6, 12")
    a.i("s_add_u32 s10, s10, s9")
    a.i(f"s_add_u32 s11, s10, {29*1024}")
    d = []
    for i in range(4):
        for T in range(2):
            d.append((tags[i], i * 2048 + T * 32, 10 + T, i * 1024))
    finish(d)

    role("k0_wd")
    srd(a, 44, P_WD, 1792 * 896)
    srd(a, 56, P_WS, WDF_SZ, WDF)
    a.i("s_sub_u32 s4, s2, 182")
    a.i("s_lshl_b32 s4, s4, 2")
    a.i("s_add_u32 s4, s4, s3")
    assert all((w * 4682) >> 16 == w // 14 for w in range(196))
    a.i("s_mul_i32 s5, s4, 4682")
    a.i("s_lshr_b32 s5, s5, 16")
    a.i("s_mul_i32 s6, s5, 14")
    a.i("s_sub_u32 s6, s4, s6")
    src_off(896)
    tr_addr(False)
    a.i(f"s_mul_i32 s7, s6, {8*16*896}")
    a.i("s_lshl_b32 s9, s5, 6")
    a.i("s_add_u32 s7, s7, s9")
    a.i("s_mov_b32 m0, s8")
    tags = []
    for i in range(8):
        tags.append(a.i("buffer_load_dwordx4 v4, s[44:47], s7 offen lds"))
        if i < 7:
            a.i("s_add_u32 m0, m0, 1024")
            a.i(f"s_add_u32 s7, s7, {16*896}")
    a.i("s_lshl_b32 s10, s4, 13")
    a.i("s_add_u32 s11, s10, 4096")
    finish([(tags[i], i * 1024, 10 + i // 4, (i % 4) * 1024) for i in range(8)])

    role("k0_wo")
    srd(a, 44, P_WO, 448 * 896)
    srd(a, 56, P_WS, WOF_SZ, WOF)
    a.i("s_sub_u32 s5, s2, 231")
    src_off(896)
    a.i("v_cmp_gt_u32 vcc, 48, v1")
    a.i(f"v_mov_b32 v6, {hex(OOB)}")
    a.i("v_cndmask_b32 v6, v6, v4, vcc")
    tr_addr(False)
    a.i("s_lshr_b32 s6, s5, 2")
    a.i("s_mul_i32 s6, s6, 224")
    a.i("s_and_b32 s9, s5, 3")
    a.i("s_lshl_b32 s9, s9, 6")
    a.i("s_add_u32 s6, s6, s9")
    a.i(f"s_mul_i32 s7, s3, {4*28*896}")
    a.i("s_add_u32 s7, s7, s6")
    a.i("s_mov_b32 m0, s8")
    tags = []
    for i in range(8):
        tags.append(a.i(f"buffer_load_dwordx4 v{4 if i%2==0 else 6}, s[44:47], s7 offen lds"))
        if i < 7:
            a.i("s_add_u32 m0, m0, 1024")
            a.i(f"s_add_u32 s7, s7, {16*896 if i%2==0 else 12*896}")
    a.i("s_lshl_b32 s10, s5, 2")
    a.i("s_add_u32 s10, s10, s3")
    a.i("s_lshl_b32 s10, s10, 13")
    a.i("s_add_u32 s11, s10, 4096")
    finish([(tags[i], i * 1024, 10 + i // 4, (i % 4) * 1024) for i in range(8)])
    return (L, 256, 32768, 64, 0)


def softmax_pm(a, P, E, OUT, T, s_hf, s_L):
    mx, mn, t, b0, b1, sm = T, T + 1, T + 2, T + 3, T + 4, T + 5
    for m, op in ((mx, "v_max3_f32"), (mn, "v_min3_f32")):
        a.i(f"{op} v{m}, v{P}, v{P+1}, v{P+2}")
        for k in (3, 5, 7, 9):
            a.i(f"{op} v{m}, v{m}, v{P+k}, v{P+k+1}")
        a.i(f"{op} v{m}, v{m}, v{P+11}, v{P+11}")
        a.i(f"{op} v{t}, v{P+12}, v{P+13}, v{P+14}")
        a.i(f"{op} v{t}, v{t}, v{P+15}, v{m}")
        a.i(f"v_cndmask_b32_e64 v{m}, v{t}, v{m}, {s(s_hf,2)}")
    allsum32(a, mx, t, "v_max_f32")
    allsum32(a, mn, t, "v_min_f32")
    for sign in (0, 1):
        m = mn if sign else mx
        sl = f"-s{s_L}" if sign else f"s{s_L}"
        nsl = f"s{s_L}" if sign else f"-s{s_L}"
        a.i(f"v_mul_f32_e64 v{b0}, v{m}, {nsl}")
        a.i(f"v_mov_b32 v{b1}, 0xff800000")
        a.i(f"v_cndmask_b32_e64 v{b1}, v{b0}, v{b1}, {s(s_hf,2)}")
        for r in range(16):
            a.i(f"v_fma_f32 v{E+r}, v{P+r}, {sl}, v{b0 if r<12 else b1}")
        for r in range(16):
            a.i(f"v_exp_f32 v{E+r}, v{E+r}")
        a.i(f"v_add_f32 v{sm}, v{E}, v{E+1}")
        a.i(f"v_add_f32 v{t}, v{E+2}, v{E+3}")
        for r in range(4, 16, 2):
            a.i(f"v_add_f32 v{sm}, v{sm}, v{E+r}")
            a.i(f"v_add_f32 v{t}, v{t}, v{E+r+1}")
        a.i(f"v_add_f32 v{sm}, v{sm}, v{t}")
        allsum32(a, sm, t)
        a.i(f"v_rcp_f32 v{sm}, v{sm}")
        for r in range(16):
            a.i(f"v_mul_f32 v{E+r}, v{E+r}, v{sm}")
        for r in range(8):
            a.i(f"v_cvt_pk_bf16_f32 v{OUT+sign*8+r}, v{E+2*r}, v{E+2*r+1}")


MF = "v_mfma_f32_32x32x16_bf16"


def k1(a):
    L = "k1_kernel"
    begin(a, L)
    load_args(a)
    a.i("s_cmp_lt_u32 s2, 256")
    a.i("s_cbranch_scc1 k1_go")
    a.i("s_endpgm")
    a.label("k1_go", pad=False)
    SW, SM, SH = 3, 4, 5
    wave_lane(a, SW, 1, 2)
    cluster_ids(a, SM, SH)
    GS_L, RED_L = 86016, 90112
    accQ, accK, accV = 16, 32, 48
    WB, GB, HB, X, TM = 64, 88, 120, 128, 240
    S_X, S_W, S_PHI, S_MOD, S_KV, S_PQ = 44, 48, 52, 56, 60, 64
    s_hf, s_L, s_one = 68, 70, 71
    srd(a, S_X, P_X, 2048 * 896)
    srd(a, S_MOD, P_WS, MOD_SZ, MOD)
    srd(a, S_W, P_WQKV, 448 * 2688)
    a.i("v_and_b32 v2, 31, v1")
    a.i("v_lshrrev_b32 v3, 5, v1")
    a.i("v_lshlrev_b32 v4, 4, v0")
    a.i(f"buffer_load_dwordx4 {v(TM,4)}, v4, {s(S_MOD,4)}, 0 offen")
    a.i("v_mul_u32_u24 v4, 896, v2")
    a.i("v_lshl_add_u32 v4, v3, 4, v4")
    a.i(f"s_lshl_b32 s6, s{SM}, 2")
    a.i(f"s_add_u32 s6, s6, s{SW}")
    a.i(f"s_mul_i32 s7, s6, {32*896}")
    for k in range(28):
        a.i(f"buffer_load_dwordx4 {v(X+4*k,4)}, v4, {s(S_X,4)}, s7 offen offset:{k*32}")
    a.i("v_lshrrev_b32 v5, 2, v1")
    a.i("v_mul_u32_u24 v5, 2688, v5")
    a.i("v_and_b32 v6, 3, v1")
    a.i("v_lshl_add_u32 v5, v6, 4, v5")
    a.i(f"s_mul_i32 s8, s{SH}, 56")
    a.i(f"s_mul_i32 s9, s{SW}, {7*16*2688}")
    a.i("s_add_u32 s8, s8, s9")
    a.i(f"s_mul_i32 s9, s{SW}, {7*1024}")
    for kb in range(7):
        for part in range(3):
            a.i(f"s_add_u32 m0, s9, {part*28672 + kb*1024}")
            a.i(f"s_add_u32 s10, s8, {kb*16*2688 + part*896}")
            lastdma = a.i(f"buffer_load_dwordx4 v5, {s(S_W,4)}, s10 offen lds")
    stamp(a, 1)
    a.i("v_cmp_gt_u32 vcc, 112, v0")
    a.i("v_subrev_u32 v6, 112, v0")
    a.i("v_cndmask_b32 v6, v6, v0, vcc")
    a.i("v_lshrrev_b32 v7, 1, v6")
    a.i("v_lshlrev_b32 v7, 6, v7")
    a.i("v_and_b32 v6, 1, v6")
    a.i("v_lshl_add_u32 v7, v6, 4, v7")
    a.i("v_cndmask_b32_e64 v6, 0, 32, vcc")
    a.i(f"v_add_u32 v7, v7, v6")
    a.i(f"v_add_u32 v7, {GS_L}, v7")
    a.i("v_cmp_gt_u32 vcc, 224, v0")
    a.i("s_and_saveexec_b64 s[10:11], vcc")
    a.i(f"ds_write_b128 v7, {v(TM,4)}")
    a.i("s_mov_b64 exec, s[10:11]")
    a.i(f"v_cmp_eq_u32_e64 {s(s_hf,2)}, 1, v3")
    a.i(f"s_mov_b32 s{s_L}, {f2u(LOG2E)}")
    a.i(f"s_mov_b32 s{s_one}, 0x3f803f80")
    srd(a, S_PHI, P_WPHI, 16 * 1568)
    srd(a, S_KV, P_WS, KV_SZ, KV)
    srd(a, S_PQ, P_WS, PHIQ_SZ, PHIQ)
    for k in range(4):
        a.i(f"v_mov_b32 v{TM+4+k}, 0")
    for r in range(112):
        a.i(f"v_dot2_f32_bf16 v{TM+4+(r&1)}, v{X+r}, s{s_one}, v{TM+4+(r&1)}")
        a.i(f"v_dot2_f32_bf16 v{TM+6+(r&1)}, v{X+r}, v{X+r}, v{TM+6+(r&1)}")
    stamp(a, 2)
    a.i("v_lshlrev_b32 v8, 1, v2")
    a.i("v_mul_u32_u24 v9, 224, v3")
    a.i("v_add_u32 v8, v8, v9")
    a.i(f"v_mov_b32 v9, {hex(OOB)}")
    a.i("v_cmp_gt_u32 vcc, 28, v2")
    a.i("v_cndmask_b32 v8, v9, v8, vcc")
    a.i(f"v_cndmask_b32_e64 v9, v8, v9, {s(s_hf,2)}")
    a.i(f"s_mul_i32 s10, s{SH}, 1568")
    for blk in range(2):
        for j in range(8):
            d0 = blk * 16 + (j >> 2) * 8 + (j & 3)
            vo = 9 if d0 >= 24 else 8
            a.i(f"buffer_load_ushort v{accQ+blk*8+j}, v{vo}, {s(S_PHI,4)}, s10 offen offset:{d0*56}")
    RS, NB = 10, 11
    a.i(f"v_add_f32 v{NB}, v{TM+4}, v{TM+5}")
    a.i(f"v_add_f32 v{RS}, v{TM+6}, v{TM+7}")
    allsum32(a, NB, 12)
    allsum32(a, RS, 12)
    a.i(f"v_mul_f32 v{NB}, {f2u(1/448)}, v{NB}")
    a.i(f"v_mul_f32 v12, v{NB}, v{NB}")
    a.i(f"v_mul_f32 v{RS}, {f2u(1/448)}, v{RS}")
    a.i(f"v_sub_f32 v{RS}, v{RS}, v12")
    a.i(f"v_max_f32 v{RS}, 0, v{RS}")
    a.i(f"v_add_f32 v{RS}, {f2u(1e-5)}, v{RS}")
    a.i(f"v_rsq_f32 v{RS}, v{RS}")
    a.i(f"v_mul_f32_e64 v{NB}, -v{NB}, v{RS}")
    a.i("v_lshlrev_b32 v12, 2, v3")
    a.i("v_sub_u32 v12, v2, v12")
    for blk in range(2):
        for p in range(4):
            j = 2 * p
            f0 = blk * 16 + (j >> 2) * 8 + (j & 3)
            a.i(f"v_cmp_eq_u32 vcc, {f0}, v12")
            a.i(f"v_mov_b32 v13, 0x3f80")
            a.i(f"v_cndmask_b32 v13, 0, v13, vcc")
            a.i(f"v_cmp_eq_u32 vcc, {f0+1}, v12")
            a.i(f"v_mov_b32 v14, 0x3f800000")
            a.i(f"v_cndmask_b32 v13, v13, v14, vcc")
            a.i(f"v_accvgpr_write_b32 a{8+blk*4+p}, v13")
    for p in range(8):
        a.i(f"v_lshl_or_b32 v13, v{accQ+2*p+1}, 16, v{accQ+2*p}")
        a.i(f"v_accvgpr_write_b32 a{p}, v13")
    a.i("v_bfe_u32 v8, v1, 2, 2")
    a.i("v_lshl_add_u32 v8, v3, 3, v8")
    a.i("v_lshlrev_b32 v8, 6, v8")
    a.i("v_and_b32 v9, 3, v1")
    a.i("v_lshl_add_u32 v8, v9, 3, v8")
    a.i("v_bfe_u32 v9, v1, 4, 1")
    a.i("v_lshl_add_u32 v8, v9, 5, v8")
    a.i(f"v_add_u32 v14, {2*28672}, v8")
    a.i("v_lshlrev_b32 v9, 6, v3")
    a.i(f"v_add_u32 v9, {GS_L}, v9")
    stamp(a, 3)
    a.barrier(vm=0)
    stamp(a, 4)

    def rdW(k):
        b = WB + (k & 1) * 12
        for part in range(3):
            base, off = (8, part * 28672) if part < 2 else (14, 0)
            for q in range(2):
                a.i(f"ds_read_b64_tr_b16 {v(b+part*4+q*2,2)}, v{base} offset:{off + k*1024 + q*256}")

    def rdG(k):
        b = GB + (k & 1) * 16
        for q in range(4):
            a.i(f"ds_read_b128 {v(b+q*4,4)}, v9 offset:{k*128+q*16}")

    def hcode(k):
        g = GB + (k & 1) * 16
        h = HB + (k & 1) * 4
        out = []
        for p in range(4):
            t0, t1 = TM + 2 * p, TM + 2 * p + 1
            x = X + 4 * k + p
            out.append(f"v_lshlrev_b32 v{t0}, 16, v{x}")
            out.append(f"v_and_b32 v{t1}, 0xffff0000, v{x}")
            out.append(f"v_fma_f32 v{t0}, v{t0}, v{RS}, v{NB}")
            out.append(f"v_fma_f32 v{t1}, v{t1}, v{RS}, v{NB}")
            out.append(f"v_fma_f32 v{t0}, v{t0}, v{g+2*p}, v{g+8+2*p}")
            out.append(f"v_fma_f32 v{t1}, v{t1}, v{g+2*p+1}, v{g+8+2*p+1}")
            out.append(f"v_cvt_pk_bf16_f32 v{h+p}, v{t0}, v{t1}")
        return out

    rdG(0)
    rdW(0)
    rdG(1)
    for t in hcode(0):
        a.i(t)
    for k in range(28):
        if k + 1 < 28:
            rdW(k + 1)
        hc = hcode(k + 1) if k + 1 < 28 else []
        w = WB + (k & 1) * 12
        h = HB + (k & 1) * 4
        c = lambda r: (v(r, 16) if k else "0")
        a.i(f"{MF} {v(accK,16)}, {v(w+4,4)}, {v(h,4)}, {c(accK)}")
        for t in hc[:10]:
            a.i(t)
        a.i(f"{MF} {v(accV,16)}, {v(h,4)}, {v(w+8,4)}, {c(accV)}")
        for t in hc[10:19]:
            a.i(t)
        a.i(f"{MF} {v(accQ,16)}, {v(w,4)}, {v(h,4)}, {c(accQ)}")
        for t in hc[19:]:
            a.i(t)
        if k + 2 < 28:
            rdG(k + 2)
    stamp(a, 5)
    KBf, P, E, OUT, T6 = 64, 72, 88, 104, 120
    for p in range(8):
        a.i(f"v_cvt_pk_bf16_f32 v{KBf+p}, v{accK+2*p}, v{accK+2*p+1}")
    a.i(f"{MF} {v(P,16)}, a[0:3], {v(KBf,4)}, 0")
    a.i(f"{MF} {v(P,16)}, a[4:7], {v(KBf+4,4)}, {v(P,16)}")
    VA, QB, PQ = 128, 136, 144
    a.i("v_cmp_eq_u32 vcc, 28, v2")
    a.i(f"v_mov_b32 v13, s{s_one}")
    for p in range(8):
        a.i(f"v_cvt_pk_bf16_f32 v{VA+p}, v{accV+2*p}, v{accV+2*p+1}")
        a.i(f"v_cndmask_b32 v{VA+p}, v{VA+p}, v13, vcc")
    for p in range(8):
        a.i(f"v_cvt_pk_bf16_f32 v{QB+p}, v{accQ+2*p}, v{accQ+2*p+1}")
    a.i(f"{MF} {v(PQ,16)}, a[0:3], {v(QB,4)}, 0")
    a.i(f"{MF} {v(PQ,16)}, a[4:7], {v(QB+4,4)}, {v(PQ,16)}")
    softmax_pm(a, P, E, OUT, T6, s_hf, s_L)
    TP, TN, PB = 16, 32, 160
    for sign, acc in ((0, TP), (1, TN)):
        a.i(f"{MF} {v(acc,16)}, {v(OUT+sign*8,4)}, a[8:11], 0")
        a.i(f"{MF} {v(acc,16)}, {v(OUT+sign*8+4,4)}, a[12:15], {v(acc,16)}")
    for sign, acc in ((0, TP), (1, TN)):
        for p in range(8):
            a.i(f"v_cvt_pk_bf16_f32 v{PB+sign*8+p}, v{acc+2*p}, v{acc+2*p+1}")
    KV0 = 176
    for sign in range(2):
        a.i(f"{MF} {v(KV0+sign*16,16)}, {v(VA,4)}, {v(PB+sign*8,4)}, 0")
        a.i(f"{MF} {v(KV0+sign*16,16)}, {v(VA+4,4)}, {v(PB+sign*8+4,4)}, {v(KV0+sign*16,16)}")
    stamp(a, 6)
    a.i(f"s_lshl_b32 s10, s{SW}, 13")
    a.i(f"s_add_u32 s10, s10, {RED_L}")
    a.i("v_lshlrev_b32 v12, 4, v1")
    a.i("v_add_u32 v13, s10, v12")
    for g in range(8):
        a.i(f"ds_write_b128 v13, {v(KV0+4*g,4)} offset:{g*1024}")
    a.i(f"s_lshl_b32 s10, s{SW}, 11")
    a.i(f"s_add_u32 s10, s10, {RED_L}")
    a.i("v_add_u32 v13, s10, v12")
    a.barrier()
    R0 = 208
    for src in range(4):
        for g in range(2):
            a.i(f"ds_read_b128 {v(R0+src*8+g*4,4)}, v13 offset:{src*8192+g*1024}")
    a.i("v_lshlrev_b32 v14, 10, v3")
    a.i("v_lshl_add_u32 v14, v2, 2, v14")
    a.i(f"s_and_b32 s10, s{SW}, 1")
    a.i("s_lshl_b32 s11, s10, 12")
    a.i(f"s_lshr_b32 s12, s{SW}, 1")
    a.i("s_lshl_b32 s12, s12, 7")
    a.i("s_add_u32 s11, s11, s12")
    a.i(f"s_lshl_b32 s12, s{SH}, 13")
    a.i("s_add_u32 s11, s11, s12")
    a.i("s_cmp_eq_u32 s10, 1")
    a.i(f"s_cselect_b64 s[12:13], {s(s_hf,2)}, 0")
    a.i(f"v_mov_b32 v15, {hex(OOB)}")
    a.i("v_cndmask_b32_e64 v15, v14, v15, s[12:13]")
    for i in range(8):
        a.i(f"v_add_f32 v{R0+i}, v{R0+i}, v{R0+8+i}")
        a.i(f"v_add_f32 v{R0+16+i}, v{R0+16+i}, v{R0+24+i}")
        a.i(f"v_add_f32 v{R0+i}, v{R0+i}, v{R0+16+i}")
        a.i(f"buffer_atomic_add_f32 v{R0+i}, v{15 if i>=5 else 14}, {s(S_KV,4)}, s11 offen offset:{((i>>2)*8+(i&3))*256}")
    stamp(a, 7)
    softmax_pm(a, PQ, E, OUT, T6, s_hf, s_L)
    a.i("s_lshl_b32 s10, s6, 4")
    a.i(f"s_add_u32 s10, s10, s{SH}")
    a.i("s_lshl_b32 s10, s10, 12")
    for fr in range(4):
        a.i(f"buffer_store_dwordx4 {v(OUT+4*fr,4)}, v12, {s(S_PQ,4)}, s10 offen offset:{fr*1024}")
    endk(a, 1, 8)
    return (L, 256, RED_L + 32768, 256, 16)


def k2(a):
    L = "k2_kernel"
    begin(a, L)
    load_args(a)
    a.i("s_cmp_lt_u32 s2, 256")
    a.i("s_cbranch_scc1 k2_go")
    a.i("s_endpgm")
    a.label("k2_go", pad=False)
    SW, SM, SJ, STT, SCG = 3, 4, 5, 6, 7
    wave_lane(a, SW, 1, 2)
    cluster_ids(a, SM, SJ)
    a.i(f"s_lshl_b32 s{STT}, s{SM}, 2")
    a.i(f"s_lshr_b32 s8, s{SJ}, 2")
    a.i(f"s_add_u32 s{STT}, s{STT}, s8")
    a.i(f"s_and_b32 s{SCG}, s{SJ}, 3")
    S_X, S_MOD, S_KV, S_PQ, S_WO, S_GU, S_Y, S_X1, S_ST = 44, 48, 52, 56, 60, 64, 68, 72, 76
    s_one = 80
    UB_L, ST_L = 32768, 32768 + 1024
    srd(a, S_MOD, P_WS, MOD_SZ, MOD)
    srd(a, S_GU, P_WS, WGUF_SZ, WGUF)
    srd(a, S_KV, P_WS, KV_SZ, KV)
    srd(a, S_PQ, P_WS, PHIQ_SZ, PHIQ)
    a.i("v_and_b32 v2, 31, v1")
    a.i("v_lshrrev_b32 v3, 5, v1")
    a.i("v_lshlrev_b32 v4, 4, v1")
    KVR, SJF, ACC, TMP = 128, 64, 16, 48
    A_WO, A_PQ, A_SW = 0, 128, 192
    a.i("v_lshlrev_b32 v5, 4, v3")
    a.i(f"v_add_u32 v6, {4*448*4}, v5")
    a.i(f"v_add_u32 v5, {3*448*4}, v5")
    a.i("v_cmp_eq_u32 vcc, 0, v2")
    a.i("v_cndmask_b32 v5, v5, v6, vcc")
    a.i(f"v_mov_b32 v6, {hex(OOB)}")
    a.i("v_cmp_gt_u32 vcc, 2, v2")
    a.i("v_cndmask_b32 v5, v6, v5, vcc")
    a.i(f"s_mul_i32 s8, s{SW}, {7*64}")
    a.i(f"s_mul_i32 s9, s2, {29*1024}")
    a.i(f"s_mul_i32 s10, s{SW}, {7*1024}")
    a.i("s_add_u32 s9, s9, s10")
    a.i("s_add_u32 s10, s9, 4096")
    for k in range(7):
        a.i(f"buffer_load_dwordx4 {v(SJF+8*k,4)}, v5, {s(S_MOD,4)}, s8 offen offset:{k*64}")
        a.i(f"buffer_load_dwordx4 {v(SJF+8*k+4,4)}, v5, {s(S_MOD,4)}, s8 offen offset:{k*64+32}")
        a.i(f"buffer_load_dwordx4 {ag(A_SW+4*k,4)}, v4, {s(S_GU,4)}, s{9 if k<4 else 10} offen offset:{(k%4)*1024}")
    a.i("v_lshlrev_b32 v5, 8, v2")
    a.i("v_lshl_add_u32 v5, v3, 4, v5")
    a.i(f"s_lshl_b32 s8, s{STT}, 2")
    a.i(f"s_add_u32 s8, s8, s{SW}")
    a.i("s_lshl_b32 s8, s8, 14")
    a.i(f"s_lshl_b32 s9, s{SW}, 15")
    for hh in range(4):
        for ks in range(4):
            a.i(f"buffer_load_dwordx4 {ag(A_PQ+hh*16+ks*4,4)}, v4, {s(S_PQ,4)}, s8 offen offset:{ks*1024}")
            for q in range(2):
                a.i(f"buffer_load_dwordx4 {v(KVR+hh*32+ks*8+q*4,4)}, v5, {s(S_KV,4)}, s9 offen offset:{ks*64+q*32}")
        if hh < 3:
            a.i("s_add_u32 s8, s8, 4096")
            a.i("s_add_u32 s9, s9, 8192")
    srd(a, S_WO, P_WS, WOF_SZ, WOF)
    srd(a, S_X, P_X, 2048 * 896)
    srd(a, S_Y, P_WS, Y_SZ, Y)
    srd(a, S_X1, P_WS, X1_SZ, X1)
    srd(a, S_ST, P_WS, STATS_SZ, STATS)
    a.i(f"s_mov_b32 s{s_one}, 0x3f803f80")
    stamp(a, 1)
    for k in range(7):
        for p in range(4):
            a.i(f"v_cvt_pk_bf16_f32 v{SJF+8*k+p}, v{SJF+8*k+2*p}, v{SJF+8*k+2*p+1}")
        a.i(f"{MF} {v(ACC,16)}, {v(SJF+8*k,4)}, {ag(A_SW+4*k,4)}, {v(ACC,16) if k else 0}")
    a.i(f"s_lshl_b32 s8, s{SCG}, 2")
    a.i(f"s_add_u32 s8, s8, s{SW}")
    a.i("s_lshl_b32 s8, s8, 15")
    for ks in range(32):
        a.i(f"buffer_load_dwordx4 {ag(A_WO+4*ks,4)}, v4, {s(S_WO,4)}, s8 offen offset:{(ks%4)*1024}")
        if ks % 4 == 3 and ks < 31:
            a.i("s_add_u32 s8, s8, 4096")
    a.i(f"s_lshl_b32 s8, s{SW}, 8")
    a.i("v_lshlrev_b32 v6, 3, v2")
    a.i(f"v_add_u32 v7, {UB_L}, v6")
    a.i("v_add_u32 v6, s8, v7")
    a.i("s_mov_b32 exec_hi, 0")
    a.i(f"ds_write_b64 v6, {v(ACC,2)}")
    a.i("s_mov_b32 exec_hi, -1")
    XR, GA, G2 = 64, 72, 88
    a.i(f"s_mul_i32 s8, s{SCG}, 224")
    a.i(f"s_lshl_b32 s9, s{SW}, 6")
    a.i("s_add_u32 s8, s8, s9")
    a.i(f"s_mul_i32 s11, s{STT}, {32*896}")
    a.i("s_add_u32 s11, s11, s8")
    a.i("v_mul_u32_u24 v8, 896, v2")
    a.i("v_lshl_add_u32 v9, v3, 3, v8")
    for g in range(4):
        a.i(f"buffer_load_dwordx2 {v(XR+2*g,2)}, v9, {s(S_X,4)}, s11 offen offset:{g*16}")
    a.i("s_lshl_b32 s8, s8, 1")
    a.i(f"s_add_u32 s9, s8, {2*448*4}")
    a.i(f"s_add_u32 s10, s8, {4*448*4}")
    a.i("v_lshlrev_b32 v9, 4, v3")
    for g in range(4):
        a.i(f"buffer_load_dwordx4 {v(GA+4*g,4)}, v9, {s(S_MOD,4)}, s9 offen offset:{g*32}")
        a.i(f"buffer_load_dwordx4 {v(G2+4*g,4)}, v9, {s(S_MOD,4)}, s10 offen offset:{g*32}")
    stamp(a, 2)
    a.i(f"s_lshl_b32 s8, s{SW}, 13")
    a.i("v_add_u32 v10, s8, v4")
    accs = [16, 32]
    for hh in range(4):
        acc = accs[hh & 1]
        kb = KVR + hh * 32
        for ks in range(4):
            for p in range(4):
                a.i(f"v_cvt_pk_bf16_f32 v{kb+ks*8+p}, v{kb+ks*8+2*p}, v{kb+ks*8+2*p+1}")
            a.i(f"{MF} {v(acc,16)}, {v(kb+ks*8,4)}, {ag(A_PQ+hh*16+ks*4,4)}, {v(acc,16) if ks else 0}")
        a.i(f"v_mov_b32 v11, v{acc+12}")
        a.i(f"v_mov_b32 v12, v{acc+12}")
        a.i("v_permlane32_swap_b32 v11, v12")
        a.i(f"v_add_f32 v12, {f2u(1e-6)}, v12")
        a.i("v_rcp_f32 v12, v12")
        for r in range(16):
            a.i(f"v_mul_f32 v{acc+r}, v{acc+r}, v12")
        for p in range(8):
            a.i(f"v_cvt_pk_bf16_f32 v{TMP+p}, v{acc+2*p}, v{acc+2*p+1}")
        a.i(f"ds_write_b128 v10, {v(TMP,4)} offset:{hh*2048}")
        a.i(f"ds_write_b128 v10, {v(TMP+4,4)} offset:{hh*2048+1024}")
    stamp(a, 3)
    a.barrier()
    stamp(a, 4)
    a.i(f"s_cmp_lt_u32 s2, 112")
    a.i(f"s_cselect_b32 s8, s{SW}, 1")
    a.i("s_cmp_eq_u32 s8, 0")
    a.i("s_cbranch_scc0 k2_noside")
    save = (list(a.vm), list(a.lg))
    for k in range(4):
        a.i(f"ds_read_b64 {v(112+2*k,2)}, v7 offset:{k*256}")
    for c_ in range(2):
        a.i(f"v_add_f32 v{112+c_}, v{112+c_}, v{114+c_}")
        a.i(f"v_add_f32 v{116+c_}, v{116+c_}, v{118+c_}")
        a.i(f"v_add_f32 v{112+c_}, v{112+c_}, v{116+c_}")
    a.i("v_cvt_pk_bf16_f32 v114, v112, v113")
    a.i("v_lshlrev_b32 v115, 16, v114")
    a.i("v_and_b32 v116, 0xffff0000, v114")
    a.i("v_sub_f32 v115, v112, v115")
    a.i("v_sub_f32 v116, v113, v116")
    a.i("v_cvt_pk_bf16_f32 v115, v115, v116")
    a.i("v_and_b32 v120, 0xffff, v114")
    a.i("v_lshl_or_b32 v120, v115, 16, v120")
    a.i("v_mov_b32 v121, v114")
    a.i("v_lshrrev_b32 v122, 16, v115")
    a.i("v_and_b32 v116, 0xffff0000, v114")
    a.i("v_or_b32 v122, v122, v116")
    a.i("v_mov_b32 v123, 0")
    a.i("v_cmp_eq_u32 vcc, 0, v3")
    for r in range(120, 123):
        a.i(f"v_cndmask_b32 v{r}, 0, v{r}, vcc")
    a.i(f"s_mul_i32 s8, s2, {29*1024}")
    a.i(f"s_add_u32 s8, s8, {28*1024}")
    a.i(f"buffer_store_dwordx4 v[120:123], v4, {s(S_GU,4)}, s8 offen")
    a.label("k2_noside", pad=False)
    a.vm, a.lg = save[0], []
    OB = 128
    acc = 16
    for ks in range(8):
        a.i(f"ds_read_b128 {v(OB+4*ks,4)}, v4 offset:{ks*1024}")
    for ks in range(32):
        a.i(f"{MF} {v(acc,16)}, {ag(A_WO+4*ks,4)}, {v(OB+4*(ks%8),4)}, {v(acc,16) if ks else 0}")
        if ks + 8 < 32:
            a.i(f"ds_read_b128 {v(OB+4*(ks%8),4)}, v4 offset:{(ks+8)*1024}")
    stamp(a, 5)
    a.wait(vm=0)
    stamp(a, 6)
    PK, YP, U = 32, 40, 48
    S1, S2 = 12, 13
    a.i(f"v_mov_b32 v{S1}, 0")
    a.i(f"v_mov_b32 v{S2}, 0")
    a.i(f"s_mul_i32 s8, s{STT}, 28")
    a.i(f"s_mul_i32 s9, s{SCG}, 7")
    a.i("s_add_u32 s8, s8, s9")
    a.i(f"s_lshl_b32 s9, s{SW}, 1")
    a.i("s_add_u32 s8, s8, s9")
    a.i("s_lshl_b32 s8, s8, 10")
    a.i("v_lshl_add_u32 v9, v3, 4, v8")
    for blk in range(2):
        if blk == 1:
            a.i(f"s_cmp_eq_u32 s{SW}, 3")
            a.i("s_cbranch_scc1 k2_half")
        for p in range(4):
            r = blk * 8 + 2 * p
            x = XR + blk * 4 + p
            a.i(f"v_lshlrev_b32 v{U}, 16, v{x}")
            a.i(f"v_and_b32 v{U+1}, 0xffff0000, v{x}")
            a.i(f"v_fmac_f32 v{U}, v{GA+r}, v{acc+r}")
            a.i(f"v_fmac_f32 v{U+1}, v{GA+r+1}, v{acc+r+1}")
            pk = PK + blk * 4 + p
            a.i(f"v_cvt_pk_bf16_f32 v{pk}, v{U}, v{U+1}")
            a.i(f"v_lshlrev_b32 v{U}, 16, v{pk}")
            a.i(f"v_and_b32 v{U+1}, 0xffff0000, v{pk}")
            a.i(f"v_dot2_f32_bf16 v{S1}, v{pk}, s{s_one}, v{S1}")
            a.i(f"v_dot2_f32_bf16 v{S2}, v{pk}, v{pk}, v{S2}")
            a.i(f"v_mul_f32 v{U}, v{U}, v{G2+r}")
            a.i(f"v_mul_f32 v{U+1}, v{U+1}, v{G2+r+1}")
            a.i(f"v_cvt_pk_bf16_f32 v{YP+blk*4+p}, v{U}, v{U+1}")
        a.i(f"buffer_store_dwordx4 {v(YP+blk*4,4)}, v4, {s(S_Y,4)}, s8 offen offset:{blk*1024}")
        b = PK + blk * 4
        a.i(f"v_permlane32_swap_b32 v{b}, v{b+2}")
        a.i(f"v_permlane32_swap_b32 v{b+1}, v{b+3}")
        a.i(f"buffer_store_dwordx4 {v(b,4)}, v9, {s(S_X1,4)}, s11 offen offset:{blk*32}")
    a.label("k2_half")
    allsum32(a, S1, 14)
    allsum32(a, S2, 14)
    a.i(f"s_lshl_b32 s8, s{SW}, 8")
    a.i(f"v_add_u32 v7, {ST_L-UB_L}, v7")
    a.i("v_add_u32 v6, s8, v7")
    a.i(f"ds_write_b64 v6, {v(S1,2)}")
    a.barrier()
    a.i(f"s_cmp_eq_u32 s{SW}, 0")
    a.i("s_cbranch_scc0 k2_end")
    for k in range(4):
        a.i(f"ds_read_b64 {v(112+2*k,2)}, v7 offset:{k*256}")
    for c_ in range(2):
        a.i(f"v_add_f32 v{112+c_}, v{112+c_}, v{114+c_}")
        a.i(f"v_add_f32 v{116+c_}, v{116+c_}, v{118+c_}")
        a.i(f"v_add_f32 v{112+c_}, v{112+c_}, v{116+c_}")
    a.i(f"s_lshl_b32 s8, s{STT}, 10")
    a.i(f"s_lshl_b32 s9, s{SCG}, 3")
    a.i("s_add_u32 s8, s8, s9")
    a.i("v_lshlrev_b32 v6, 5, v2")
    a.i(f"buffer_store_dwordx2 v[112:113], v6, {s(S_ST,4)}, s8 offen")
    a.label("k2_end", pad=False)
    endk(a, 2, 7)
    return (L, 256, 32768 + 2048, 256, 224)


GC1 = 2.0 * 0.7978845608028654 * LOG2E
GC2 = GC1 * 0.044715


def k3(a):
    L = "k3_kernel"
    begin(a, L)
    load_args(a)
    a.i("s_cmp_lt_u32 s2, 224")
    a.i("s_cbranch_scc1 k3_go")
    a.i("s_endpgm")
    a.label("k3_go", pad=False)
    SW, SM, SJ = 3, 4, 5
    wave_lane(a, SW, 1, 2)
    cluster_ids(a, SM, SJ)
    S_Y, S_GU, S_ST, S_ACT = 44, 48, 52, 56
    srd(a, S_Y, P_WS, Y_SZ, Y)
    srd(a, S_GU, P_WS, WGUF_SZ, WGUF)
    srd(a, S_ST, P_WS, STATS_SZ, STATS)
    srd(a, S_ACT, P_WS, ACT_SZ, ACT)
    a.i("v_and_b32 v2, 31, v1")
    a.i("v_lshrrev_b32 v3, 5, v1")
    a.i("v_lshlrev_b32 v4, 4, v1")
    ST0, SF, CF, YB, ACC, TMP = 192, 224, 240, 96, 16, 128
    a.i("v_lshlrev_b32 v5, 5, v2")
    a.i(f"s_lshl_b32 s6, s{SM}, 12")
    for tt in range(4):
        for q in range(2):
            a.i(f"buffer_load_dwordx4 {v(ST0+tt*8+q*4,4)}, v5, {s(S_ST,4)}, s6 offen offset:{tt*1024+q*16}")
    a.i(f"s_mul_i32 s7, s{SW}, {7*1024}")
    a.i(f"s_mul_i32 s8, s{SM}, {112*1024}")
    a.i("s_add_u32 s8, s8, s7")
    ytag = {}

    def ydma(tt):
        for g in range(2):
            a.i(f"s_add_u32 m0, s7, {tt*28*1024 + g*4096}")
            a.i(f"s_add_u32 s9, s8, {tt*28*1024 + g*4096}")
            for k in range(4 if g == 0 else 3):
                ytag[tt] = a.i(f"buffer_load_dwordx4 v4, {s(S_Y,4)}, s9 offen offset:{k*1024} lds")

    ydma(0)
    a.i(f"s_lshl_b32 s10, s{SJ}, 2")
    a.i(f"s_add_u32 s10, s10, s{SW}")
    a.i(f"s_mul_i32 s10, s10, {58*1024}")
    a.i(f"s_add_u32 s11, s10, {29*1024}")
    for ks in range(29):
        for T in range(2):
            a.i(f"buffer_load_dwordx4 {ag(T*116+4*ks,4)}, v4, {s(S_GU,4)}, s{10+T} offen offset:{(ks%4)*1024}")
        if ks % 4 == 3:
            a.i("s_add_u32 s10, s10, 4096")
            a.i("s_add_u32 s11, s11, 4096")
        if ks == 13:
            ydma(1)
    ydma(2)
    ydma(3)
    stamp(a, 1)
    a.i("v_cmp_eq_u32 vcc, 0, v3")
    for tt in range(4):
        b = ST0 + tt * 8
        for c_ in range(2):
            a.i(f"v_add_f32 v{b+c_}, v{b+c_}, v{b+2+c_}")
            a.i(f"v_add_f32 v{b+4+c_}, v{b+4+c_}, v{b+6+c_}")
            a.i(f"v_add_f32 v{b+c_}, v{b+c_}, v{b+4+c_}")
        a.i(f"v_mul_f32 v{b}, {f2u(-1/448)}, v{b}")
        a.i(f"v_mul_f32 v{b+1}, {f2u(1/448)}, v{b+1}")
        a.i(f"v_fma_f32 v{b+1}, -v{b}, v{b}, v{b+1}")
        a.i(f"v_max_f32 v{b+1}, 0, v{b+1}")
        a.i(f"v_add_f32 v{b+1}, {f2u(1e-5)}, v{b+1}")
        c0 = CF + tt * 3
        a.i(f"v_mov_b32 v{c0+2}, v{b+1}")
        a.i(f"v_rsq_f32 v{b+2}, v{b+1}")
        a.i(f"v_mul_f32 v{b+1}, v{b+1}, v{b+2}")
        a.i(f"v_mul_f32 v{c0}, {f2u(-GC1)}, v{b+2}")
        a.i(f"v_mul_f32 v{b+3}, v{b+2}, v{b+2}")
        a.i(f"v_mul_f32 v{b+3}, v{b+3}, v{b+2}")
        a.i(f"v_mul_f32 v{c0+1}, {f2u(-GC2)}, v{b+3}")
        a.i(f"v_cvt_pk_bf16_f32 v{b+2}, v{b}, v{b+1}")
        a.i(f"v_lshlrev_b32 v{b+3}, 16, v{b+2}")
        a.i(f"v_and_b32 v{b+4}, 0xffff0000, v{b+2}")
        a.i(f"v_sub_f32 v{b+5}, v{b}, v{b+3}")
        a.i(f"v_sub_f32 v{b+6}, v{b+1}, v{b+4}")
        a.i(f"v_cvt_pk_bf16_f32 v{b+5}, v{b+5}, v{b+6}")
        f = SF + tt * 4
        a.i(f"v_lshrrev_b32 v{f}, 16, v{b+3}")
        a.i(f"v_or_b32 v{f}, v{f}, v{b+3}")
        a.i(f"v_and_b32 v{f+1}, 0xffff, v{b+5}")
        a.i(f"v_or_b32 v{f+1}, v{f+1}, v{b+4}")
        a.i(f"v_lshrrev_b32 v{f+2}, 16, v{b+4}")
        a.i(f"v_and_b32 v{b+5}, 0xffff0000, v{b+5}")
        a.i(f"v_or_b32 v{f+2}, v{f+2}, v{b+5}")
        a.i(f"v_mov_b32 v{f+3}, 0")
        for r in range(3):
            a.i(f"v_cndmask_b32 v{f+r}, 0, v{f+r}, vcc")
    a.i(f"s_mul_i32 s12, s{SM}, {4*112}")
    a.i(f"s_lshl_b32 s13, s{SJ}, 3")
    a.i("s_add_u32 s12, s12, s13")
    a.i(f"s_lshl_b32 s13, s{SW}, 1")
    a.i("s_add_u32 s12, s12, s13")
    a.i("s_lshl_b32 s12, s12, 10")
    a.i(f"v_add_u32 v6, {56*1024}, v4")

    def epi(tt):
        out = []
        c0 = CF + tt * 3
        for T in range(2):
            acc = ACC + (tt & 1) * 32 + T * 16
            t = TMP + T * 16
            for j in range(8):
                out.append(f"v_mul_f32 v{t+j}, v{acc+j}, v{acc+j}")
            for j in range(8):
                out.append(f"v_fma_f32 v{t+j}, v{t+j}, v{c0+1}, v{c0}")
            for j in range(8):
                out.append(f"v_mul_f32 v{t+j}, v{t+j}, v{acc+j}")
            for j in range(8):
                out.append(f"v_exp_f32 v{t+j}, v{t+j}")
                out.append(f"v_mul_f32 v{t+8+j}, v{acc+j}, v{acc+8+j}")
            for j in range(8):
                out.append(f"v_fma_f32 v{t+j}, v{t+j}, v{c0+2}, v{c0+2}")
            for j in range(8):
                out.append(f"v_rcp_f32 v{t+j}, v{t+j}")
            for j in range(8):
                out.append(f"v_mul_f32 v{t+j}, v{t+j}, v{t+8+j}")
            for p in range(4):
                out.append(f"v_cvt_pk_bf16_f32 v{t+8+p}, v{t+2*p}, v{t+2*p+1}")
            out.append(f"buffer_store_dwordx4 {v(t+8,4)}, v4, {s(S_ACT,4)}, s13 offen offset:{T*1024}")
        return [f"s_add_u32 s13, s12, {tt*112*1024}"] + out

    NB = 6

    def yrd(tt, ks):
        i = tt * 28 + ks
        base, off = (4, i * 1024) if i < 56 else (6, (i - 56) * 1024)
        a.i(f"ds_read_b128 {v(YB+4*((tt*28+ks)%NB),4)}, v{base} offset:{off}")

    for tt in range(4):
        a.wait_vm_id(ytag[tt])
        a.i("s_barrier")
        stamp(a, 2 + tt)
        for ks in range(NB - 1):
            yrd(tt, ks)
        ep = epi(tt - 1) if tt else []
        per = -(-len(ep) // 54) if ep else 0
        for ks in range(29):
            if ks + NB - 1 < 28:
                yrd(tt, ks + NB - 1)
            B = v(YB + 4 * ((tt * 28 + ks) % NB), 4) if ks < 28 else v(SF + tt * 4, 4)
            for T in range(2):
                acc = ACC + (tt & 1) * 32 + T * 16
                a.i(f"{MF} {v(acc,16)}, {ag(T*116+4*ks,4)}, {B}, {v(acc,16) if ks else 0}")
                if ks >= 1:
                    for _ in range(per):
                        if ep:
                            a.i(ep.pop(0))
        while ep:
            a.i(ep.pop(0))
    stamp(a, 6)
    for t in epi(3):
        a.i(t)
    endk(a, 3, 7)
    return (L, 224, 112 * 1024, 256, 232)


def k4(a):
    L = "k4_kernel"
    begin(a, L)
    load_args(a)
    a.i("s_cmp_lt_u32 s2, 224")
    a.i("s_cbranch_scc1 k4_go")
    a.i("s_endpgm")
    a.label("k4_go", pad=False)
    SW, SM, SJ, STH, SNG = 3, 4, 5, 6, 7
    wave_lane(a, SW, 1, 2)
    cluster_ids(a, SM, SJ)
    a.i(f"s_cmp_ge_u32 s{SJ}, 7")
    a.i(f"s_cselect_b32 s{STH}, 1, 0")
    a.i(f"s_mul_i32 s8, s{STH}, 7")
    a.i(f"s_sub_u32 s{SNG}, s{SJ}, s8")
    S_ACT, S_WD, S_X1, S_MOD, S_OUT = 44, 48, 52, 56, 60
    srd(a, S_ACT, P_WS, ACT_SZ, ACT)
    srd(a, S_WD, P_WS, WDF_SZ, WDF)
    a.i("v_and_b32 v2, 31, v1")
    a.i("v_lshrrev_b32 v3, 5, v1")
    a.i("v_lshlrev_b32 v4, 4, v1")
    ACC, AB, NR = 16, 96, 16
    a.i(f"s_lshl_b32 s8, s{SM}, 1")
    a.i(f"s_add_u32 s8, s8, s{STH}")
    a.i(f"s_mul_i32 s9, s{SW}, {28*1024}")
    a.i(f"s_mul_i32 s10, s8, {2*112*1024}")
    a.i("s_add_u32 s10, s10, s9")
    a.i(f"s_add_u32 s11, s10, {112*1024}")
    a.i(f"s_mul_i32 s12, s{SNG}, {2*112*1024}")
    a.i("s_add_u32 s12, s12, s9")
    a.i(f"s_add_u32 s13, s12, {112*1024}")

    def ld(ks):
        o = (ks % 4) * 1024
        for T in range(2):
            a.i(f"buffer_load_dwordx4 {ag(T*112+4*ks,4)}, v4, {s(S_WD,4)}, s{12+T} offen offset:{o}")
        for t in range(2):
            a.i(f"buffer_load_dwordx4 {v(AB+(ks%NR)*8+4*t,4)}, v4, {s(S_ACT,4)}, s{10+t} offen offset:{o}")
        if ks % 4 == 3:
            for r in range(10, 14):
                a.i(f"s_add_u32 s{r}, s{r}, 4096")

    PRE = 15
    for ks in range(PRE):
        ld(ks)
    stamp(a, 1)
    srd(a, S_X1, P_WS, X1_SZ, X1)
    srd(a, S_MOD, P_WS, MOD_SZ, MOD)
    srd(a, S_OUT, P_OUT, 2048 * 896)
    STR = 272
    a.i(f"v_mul_u32_u24 v5, {STR}, v2")
    a.i("v_lshl_add_u32 v5, v3, 4, v5")
    a.i(f"s_mul_i32 s14, s{SW}, {64*STR}")
    a.i("v_add_u32 v5, s14, v5")
    a.i("v_lshrrev_b32 v6, 3, v0")
    a.i("v_and_b32 v7, 7, v0")
    a.i(f"v_mul_u32_u24 v8, {STR}, v6")
    a.i("v_lshl_add_u32 v8, v7, 5, v8")
    a.i("v_mul_u32_u24 v9, 896, v6")
    a.i("v_lshl_add_u32 v9, v7, 4, v9")
    a.i("v_lshlrev_b32 v10, 5, v7")
    a.i(f"s_mul_i32 s14, s8, {64*896}")
    a.i(f"s_lshl_b32 s15, s{SNG}, 7")
    a.i("s_add_u32 s14, s14, s15")
    a.i(f"s_add_u32 s42, s14, {32*896}")
    a.i("s_lshl_b32 s15, s15, 1")
    a.i(f"s_add_u32 s15, s15, {5*448*4}")
    XR, GB = 224, 232
    for ks in range(28):
        for T in range(2):
            for t in range(2):
                acc = ACC + (T * 2 + t) * 16
                a.i(f"{MF} {v(acc,16)}, {ag(T*112+4*ks,4)}, {v(AB+(ks%NR)*8+4*t,4)}, {v(acc,16) if ks else 0}")
        if ks + PRE < 28:
            ld(ks + PRE)
        if ks == 0:
            stamp(a, 2)
        if ks == 14:
            a.i(f"buffer_load_dwordx4 {v(XR,4)}, v9, {s(S_X1,4)}, s14 offen")
            a.i(f"buffer_load_dwordx4 {v(XR+4,4)}, v9, {s(S_X1,4)}, s42 offen")
            a.i(f"buffer_load_dwordx4 {v(GB,4)}, v10, {s(S_MOD,4)}, s15 offen")
            a.i(f"buffer_load_dwordx4 {v(GB+4,4)}, v10, {s(S_MOD,4)}, s15 offen offset:16")
    stamp(a, 3)
    for T in range(2):
        for t in range(2):
            acc = ACC + (T * 2 + t) * 16
            for g in range(4):
                a.i(f"ds_write_b128 v5, {v(acc+4*g,4)} offset:{t*32*STR + T*128 + g*32}")
    a.barrier()
    stamp(a, 4)
    R = 96
    for p in range(2):
        for w in range(4):
            for q in range(2):
                a.i(f"ds_read_b128 {v(R+p*32+w*8+q*4,4)}, v8 offset:{w*64*STR + p*32*STR + q*16}")
    for p in range(2):
        b = R + p * 32
        for k in range(8):
            a.i(f"v_add_f32 v{b+k}, v{b+k}, v{b+8+k}")
            a.i(f"v_add_f32 v{b+16+k}, v{b+16+k}, v{b+24+k}")
            a.i(f"v_add_f32 v{b+k}, v{b+k}, v{b+16+k}")
        for q in range(4):
            x = XR + p * 4 + q
            a.i(f"v_lshlrev_b32 v{b+8}, 16, v{x}")
            a.i(f"v_and_b32 v{b+9}, 0xffff0000, v{x}")
            a.i(f"v_fmac_f32 v{b+8}, v{GB+2*q}, v{b+2*q}")
            a.i(f"v_fmac_f32 v{b+9}, v{GB+2*q+1}, v{b+2*q+1}")
            a.i(f"v_cvt_pk_bf16_f32 v{b+12+q}, v{b+8}, v{b+9}")
        a.i(f"buffer_store_dwordx4 {v(b+12,4)}, v9, {s(S_OUT,4)}, s{14 if p==0 else 42} offen")
    endk(a, 4, 5)
    return (L, 224, 4 * 64 * STR, 256, 224)


def main(out):
    hdr = open(f"cdna_kernels/{NAME}.s.ref").read().split("; Override")[0]
    a = Asm()
    ks = [k(a) for k in (k0, k1, k2, k3, k4)]
    t = hdr
    for (L, g, lds, nv, na) in ks:
        t += f"; @launch kernel={L} grid=({g},1,1) block=(256,1,1) lds={lds}\n"
    t += '.amdgcn_target "amdgcn-amd-amdhsa--gfx950"\n.text\n'
    for k in ks:
        t += f".globl {k[0]}\n"
    t += a.text()
    t += '.section .rodata,"a"\n'
    for (L, g, lds, nv, na) in ks:
        t += f""".p2align 6
.amdhsa_kernel {L}
  .amdhsa_next_free_vgpr {nv+na}
  .amdhsa_next_free_sgpr 102
  .amdhsa_accum_offset {nv}
  .amdhsa_group_segment_fixed_size 0
  .amdhsa_kernarg_size 104
  .amdhsa_user_sgpr_count 2
  .amdhsa_user_sgpr_kernarg_segment_ptr 1
  .amdhsa_system_sgpr_workgroup_id_x 1
.end_amdhsa_kernel
"""
    open(out, "w").write(t)
    print("instructions:", a.count, "nop states added:", a.nops_added, "bytes:", len(t))


if __name__ == "__main__":
    if len(sys.argv) > 2:
        PROF = True
    main(sys.argv[1] if len(sys.argv) > 1 else f"cdna_kernels/{NAME}.s")
```

```python
import sys
from asmlib import Asm, v, ag, s
from gen1 import (NAME, load_args, srd, f2u, allsum32, LOG2E, GC1, GC2, OOB,
                  P_X, P_WQKV, P_WPHI, P_WO, P_WG, P_WU, P_WD, P_C, P_WMOD, P_OUT, P_WS)

MF = "v_mfma_f32_32x32x16_bf16"
MF16 = "v_mfma_f32_16x16x32_bf16"

FLAG0, FLAGX, AFLAG, MODG = 0x1000, 0x2000, 0x4000, 0x10000
CLR0, CLR_PER = 0x100000, 20480
KVP, OO, YY, STATS = 0x100000, 0x200000, 0x400000, 0x5C0000
X1, ACT, WS_SZ = 0x600000, 0x800000, 0x1000000
PROF_OFF = 0x8000000
EX = 86016
MR = EX
MISC = 135168
GS, PHI, IDN = MISC, MISC + 1792, MISC + 1792 + 2048
TABF, TABH = MISC, MISC + 5376
TS = 147456
RED, SUM, OST = 0, 32768, 0
PX3, STP, PX = 114688, 131072, 114688
SLAB = (0, 65536)
LDS_SZ = 163840
SW, SM, SJ, SJJ, SB, STT, SKH, STAG, SBUD = 3, 4, 5, 6, 7, 8, 9, 10, 11
S_WS, S_X, S_WQ, S_WO, S_WG, S_WU, S_T, S_C = 44, 48, 52, 56, 60, 64, 68, 72
S_WD, S_OUT = S_WQ, S_WO
HFM, SL2E, STS, SGU, SWO, SPT = 76, 78, 79, 80, 81, 82
SONL, SONH = 42, 43
L16, T31, HF = 1, 2, 3
VP = 15

PROF = False
STOP = 99
POOL = list(range(84, 100, 2))


class G(Asm):
    def __init__(self):
        super().__init__()
        self.pend = []
        self.nl = 0

    def st(self, n):
        if not PROF:
            return
        if len(self.pend) == len(POOL):
            self.flush()
        r = POOL[len(self.pend)]
        self.i(f"s_memrealtime s[{r}:{r+1}]")
        self.pend.append((r, n))

    def flush(self):
        if self.pend:
            self.force_wait(lg=0)
            for r, n in self.pend:
                self.i(f"v_writelane_b32 v{VP}, s{r}, {n}")
            self.pend = []

    def bar(self, n=None, vm=None):
        if n is not None:
            self.st(n)
        self.flush()
        self.barrier(vm=vm)
        if n is not None:
            self.st(n + 1)

    def lab(self, p):
        self.nl += 1
        return f"{p}_{self.nl}"

    def if_(self, group, want=1):
        self.flush()
        L = self.lab("e" + group)
        self.i(f"s_cbranch_scc{1-want} {L}")
        self.begin_if(group)
        self.ifs = getattr(self, "ifs", []) + [L]

    def fi(self):
        self.flush()
        L = self.ifs.pop()
        self.end_if()
        self.label(L, pad=False)

    def dummy(self, n):
        for _ in range(n):
            self.nid += 1
            self.vm.append((self.nid, set(), None))
        return self.nid

    def poll(self, last, check, reissue):
        self.wait_vm_id(last)
        Lc, Ld = self.lab("pc"), self.lab("pd")
        self.label(Lc, pad=False)
        check()
        self.i(f"s_cbranch_vccz {Ld}")
        sn = self.snapshot()
        self.i(f"s_cmp_eq_u32 s{SBUD}, 0")
        self.i(f"s_cbranch_scc1 {Ld}")
        self.i(f"s_sub_u32 s{SBUD}, s{SBUD}, 1")
        reissue()
        self.force_wait(vm=0)
        self.i(f"s_branch {Lc}")
        self.restore(sn)
        self.label(Ld, pad=False)

    def chk_sent(self, regs, t):
        regs = list(regs)
        cur = regs.pop(0)
        while regs:
            if len(regs) >= 2:
                self.i(f"v_max3_u32 v{t}, v{cur}, v{regs[0]}, v{regs[1]}")
                regs = regs[2:]
            else:
                self.i(f"v_max_u32 v{t}, v{cur}, v{regs[0]}")
                regs = regs[1:]
            cur = t
        self.i(f"v_cmp_eq_u32 vcc, -1, v{cur}")

    def chk_tag(self, regs, t, vtag):
        regs = list(regs)
        self.i(f"v_xor_b32 v{t}, v{regs[0]}, v{vtag}")
        for r in regs[1:]:
            self.i(f"v_bitop3_b32 v{t}, v{t}, v{r}, v{vtag} bitop3:0xf6")
        self.i(f"v_cmp_ne_u32 vcc, 0, v{t}")


def R4(r):
    return f"{r[0]}[{r[1]}:{r[1]+3}]"


def R2(r, o=0):
    return f"{r[0]}[{r[1]+o}:{r[1]+o+1}]"


GU_FIN = {0: ("a", 24), 8: ("v", 72), 12: ("a", 56), 13: ("a", 64)}
for p in range(1, 8):
    GU_FIN[p] = ("v", 16 + 8 * (p - 1))
for p in range(9, 12):
    GU_FIN[p] = ("a", 8 * (p - 9))
GU_RAW = dict(GU_FIN)
GU_RAW[12], GU_RAW[13] = ("v", 144), ("v", 152)
A_WO = 32


def off(r, o):
    return (r[0], r[1] + o)


def finish(a):
    a.label("fin", pad=False)
    a.reset_state()
    a.i(f"s_cmp_eq_u32 s2, 0")
    a.i(f"s_cselect_b32 s12, s{SW}, 1")
    a.i("s_cmp_eq_u32 s12, 0")
    a.i("s_cbranch_scc0 fin2")
    a.i(f"v_mov_b32 v4, s{STAG}")
    a.i("v_mov_b32 v5, 0")
    a.i(f"buffer_store_dword v4, v5, {s(S_WS,4)}, 0 offen sc1")
    a.label("fin2", pad=False)
    if PROF:
        a.st(31)
        a.flush()
        a.i(f"s_add_u32 s48, s{P_WS}, {hex(PROF_OFF)}")
        a.i(f"s_addc_u32 s49, s{P_WS+1}, 0")
        a.i(f"s_mov_b32 s50, {256*8*128}")
        a.i("s_mov_b32 s51, 0x20000")
        a.i("s_lshl_b32 s12, s2, 3")
        a.i(f"s_add_u32 s12, s12, s{SW}")
        a.i("s_lshl_b32 s12, s12, 7")
        a.i(f"v_lshrrev_b32 v4, 2, v{L16}")
        a.i("s_mov_b32 exec_hi, 0")
        a.i(f"buffer_store_dword v{VP}, v4, s[48:51], s12 offen")
    a.i("s_endpgm")


def gu_load(a, p, GUV, tmp=12):
    if p:
        a.i(f"s_add_u32 s{tmp}, s{SGU}, {p*16*3584}")
    so = tmp if p else SGU
    r = GU_RAW[p]
    a.i(f"buffer_load_dwordx4 {R4(r)}, v{GUV}, {s(S_WG,4)}, s{so} offen")
    return a.i(f"buffer_load_dwordx4 {R4(off(r,4))}, v{GUV}, {s(S_WU,4)}, s{so} offen")


def kernel(a):
    L = NAME + "_kernel"
    a.raw(".p2align 8")
    a.raw(f".type {L},@function")
    a.raw(f"{L}:")
    a.i("s_cmp_lt_u32 s2, 256")
    a.i("s_cbranch_scc1 go")
    a.i("s_endpgm")
    a.label("go", pad=False)
    load_args(a)
    if PROF:
        a.i(f"v_mov_b32 v{VP}, 0")
        a.st(0)
    a.i("v_lshrrev_b32 v4, 6, v0")
    a.i("v_and_b32 v5, 63, v0")
    a.i(f"v_readfirstlane_b32 s{SW}, v4")
    a.i("s_and_b32 s12, s2, 7")
    a.i("s_lshr_b32 s13, s2, 3")
    a.i(f"s_and_b32 s{SB}, s12, 1")
    a.i("s_lshr_b32 s12, s12, 1")
    a.i("s_lshl_b32 s12, s12, 2")
    a.i(f"s_and_b32 s{SM}, s13, 3")
    a.i(f"s_add_u32 s{SM}, s{SM}, s12")
    a.i(f"s_lshr_b32 s{SJJ}, s13, 2")
    a.i(f"s_lshl_b32 s{SJ}, s{SB}, 3")
    a.i(f"s_add_u32 s{SJ}, s{SJ}, s{SJJ}")
    a.i(f"s_and_b32 s{STT}, s{SW}, 3")
    a.i(f"s_lshr_b32 s{SKH}, s{SW}, 2")
    a.i(f"s_mov_b32 s{SBUD}, 0x10000")
    a.i(f"v_lshlrev_b32 v{L16}, 4, v5")
    a.i(f"v_and_b32 v{T31}, 31, v5")
    a.i(f"v_lshrrev_b32 v{HF}, 5, v5")
    a.i("v_lshrrev_b32 v6, 2, v5")
    a.i("v_lshrrev_b32 v7, 4, v5")
    a.i("v_xor_b32 v7, v7, v5")
    a.i("v_and_b32 v7, 3, v7")
    a.i("v_mul_u32_u24 v12, 896, v6")
    a.i("v_and_b32 v13, 3, v5")
    a.i("v_lshl_add_u32 v14, v13, 4, v12")
    a.i("v_lshl_add_u32 v12, v7, 4, v12")
    a.i(f"s_lshl_b32 s12, s{SM}, 2")
    a.i(f"s_add_u32 s12, s12, s{STT}")
    a.i(f"s_mul_i32 s14, s12, {32*896}")
    a.i(f"s_mul_i32 s13, s{SKH}, 448")
    a.i("s_add_u32 s14, s14, s13")
    a.i(f"s_add_u32 s15, s14, {16*896}")
    a.i(f"s_lshl_b32 s{STS}, s{SW}, 11")
    a.i(f"s_add_u32 s{STS}, s{STS}, {TS}")
    srd(a, S_WS, P_WS, WS_SZ)
    a.i(f"s_load_dword s{STAG}, s[{P_WS}:{P_WS+1}], 0")
    srd(a, S_X, P_X, 2048 * 896)
    a.i(f"s_cmp_eq_u32 s{SW}, 7")
    a.if_("w7")
    for r in range(8, 12):
        a.i(f"v_mov_b32 v{r}, -1")
    a.i(f"s_mul_i32 s12, s2, {CLR_PER}")
    a.i(f"s_add_u32 s12, s12, {CLR0}")
    for k in range(20):
        clr = a.i(f"buffer_store_dwordx4 v[8:11], v{L16}, {s(S_WS,4)}, s12 offen offset:{(k%4)*1024} sc1")
        if k % 4 == 3 and k < 19:
            a.i("s_add_u32 s12, s12, 4096")
    a.fi()
    MW, MC = 80, 108
    a.i("s_cmp_lt_u32 s2, 42")
    a.if_("mod")
    srd(a, S_T, P_WMOD, 448 * 5376)
    srd(a, S_C, P_C, 896)
    a.i("v_lshrrev_b32 v8, 3, v0")
    a.i("v_and_b32 v9, 7, v0")
    a.i("v_mul_u32_u24 v10, 5376, v8")
    a.i("v_lshl_add_u32 v10, v9, 4, v10")
    a.i("v_lshlrev_b32 v8, 1, v8")
    a.i("s_lshl_b32 s12, s2, 7")
    for p in range(7):
        a.i(f"buffer_load_ushort v{MC+p}, v8, {s(S_C,4)}, 0 offen offset:{p*128}")
    for p in range(7):
        a.i(f"buffer_load_dwordx4 {v(MW+4*p,4)}, v10, {s(S_T,4)}, s12 offen")
        if p < 6:
            a.i(f"s_add_u32 s12, s12, {64*5376}")
    a.fi()
    XR = 16
    for q in range(7):
        for t2 in range(2):
            a.i(f"buffer_load_dwordx4 {v(XR+8*q+4*t2,4)}, v12, {s(S_X,4)}, s{14+t2} offen offset:{q*64}")
    a.st(1)
    a.flush()
    base = a.snapshot()
    a.i(f"s_cmp_eq_u32 s{SW}, 7")
    a.i("s_cbranch_scc1 p0_w7")
    srd(a, S_WQ, P_WQKV, 448 * 2688)
    a.i("v_mul_u32_u24 v8, 2688, v6")
    a.i("v_lshl_add_u32 v8, v13, 4, v8")
    a.i(f"s_mul_i32 s12, s{SW}, {16*2688}")
    a.i(f"s_mul_i32 s13, s{SJ}, 56")
    a.i("s_add_u32 s12, s12, s13")
    a.i(f"s_mul_i32 s13, s{SW}, 3072")
    for i in range(4):
        for part in range(3):
            a.i(f"s_add_u32 m0, s13, {i*7*3072 + part*128}")
            a.i(f"buffer_load_dwordx4 v8, {s(S_WQ,4)}, s12 offen offset:{part*896} lds")
        if i < 3:
            a.i(f"s_add_u32 s12, s12, {7*16*2688}")
    a.i("s_branch p0_j")
    a.restore(base)
    a.label("p0_w7", pad=False)
    a.known = set(a.known) | {"w7"}
    srd(a, 84 if not PROF else S_WQ, P_WPHI, 16 * 1568)
    SPH = 84 if not PROF else S_WQ
    a.i("v_mul_u32_u24 v8, 56, v6")
    a.i("v_lshl_add_u32 v8, v13, 4, v8")
    a.i(f"v_add_u32 v9, {16*56}, v8")
    a.i(f"v_mov_b32 v10, {hex(OOB)}")
    a.i("v_cmp_gt_u32 vcc, 48, v5")
    a.i("v_cndmask_b32 v9, v10, v9, vcc")
    a.i(f"s_mul_i32 s12, s{SJ}, 1568")
    a.i(f"s_mov_b32 m0, {PHI}")
    a.i(f"buffer_load_dwordx4 v8, {s(SPH,4)}, s12 offen lds")
    a.i(f"s_mov_b32 m0, {PHI+1024}")
    a.i(f"buffer_load_dwordx4 v9, {s(SPH,4)}, s12 offen lds")
    for r in range(8, 12):
        a.i(f"v_mov_b32 v{r}, 0")
    a.i(f"v_add_u32 v4, {IDN}, v{L16}")
    a.i("ds_write_b128 v4, v[8:11]")
    a.i("ds_write_b128 v4, v[8:11] offset:1024")
    a.i(f"v_lshrrev_b32 v8, 4, v{T31}")
    a.i("v_lshlrev_b32 v8, 10, v8")
    a.i(f"v_lshl_add_u32 v8, v{T31}, 4, v8")
    a.i(f"v_bfe_u32 v9, v{T31}, 2, 1")
    a.i("v_lshl_add_u32 v8, v9, 9, v8")
    a.i(f"v_bfe_u32 v9, v{T31}, 3, 1")
    a.i("v_lshl_add_u32 v8, v9, 3, v8")
    a.i(f"v_and_b32 v9, 3, v{T31}")
    a.i("v_lshl_add_u32 v8, v9, 1, v8")
    a.i(f"v_add_u32 v8, {IDN}, v8")
    a.i("v_mov_b32 v9, 0x3f80")
    a.i("ds_write_b16 v8, v9")
    a.i(f"s_add_u32 s13, s{STAG}, 1")
    a.i("v_mov_b32 v9, s13")
    a.i("s_lshl_b32 s12, s2, 2")
    a.i(f"s_add_u32 s12, s12, {FLAG0}")
    a.i("v_mov_b32 v8, 0")
    a.wait_vm_id(clr)
    a.i("s_mov_b64 exec, 1")
    a.i(f"buffer_store_dword v9, v8, {s(S_WS,4)}, s12 offen sc1")
    a.i("s_mov_b64 exec, -1")
    for k in range(9):
        a.i(f"buffer_load_dword v{140+k}, v10, {s(S_X,4)}, 0 offen")
    a.restore(base)
    a.vm = [e for e in a.vm if e[2] != "w7"]
    a.lg = [(0, set(), None)] * 3
    a.hist = []
    a.label("p0_j", pad=True)
    dma_last = a.dummy(12)
    a.i(f"s_add_u32 s{STAG}, s{STAG}, 1")
    a.i(f"s_mov_b32 s{SONL}, 0x3f80")
    a.i(f"s_mov_b32 s{SONH}, 0x3f800000")
    a.i("s_cmp_lt_u32 s2, 42")
    a.if_("mod")
    AC = 116
    for p in range(7):
        c = MC + p
        a.i(f"v_lshlrev_b32 v{c}, 16, v{c}")
        a.i(f"v_mul_f32 v8, {f2u(-LOG2E)}, v{c}")
        a.i("v_exp_f32 v8, v8")
        a.i("v_add_f32 v8, 1.0, v8")
        a.i("v_rcp_f32 v8, v8")
        a.i(f"v_mul_f32 v{c}, v{c}, v8")
        a.i(f"v_cvt_pk_bf16_f32 v{c}, v{c}, 0")
        a.i(f"v_lshlrev_b32 v{124+p}, 16, v{c}")
    for p in range(7):
        for q in range(4):
            w = MW + 4 * p + q
            a.i(f"v_dot2_f32_bf16 v{AC+2*q}, v{w}, v{MC+p}, {v(AC+2*q) if p else 0}")
            a.i(f"v_dot2_f32_bf16 v{AC+2*q+1}, v{w}, v{124+p}, {v(AC+2*q+1) if p else 0}")
    for k in range(8):
        a.i(f"v_add_f32_dpp v{AC+k}, v{AC+k}, v{AC+k} row_ror:8 row_mask:0xf bank_mask:0xf")
    for op in ("v_permlane16_swap_b32", "v_permlane32_swap_b32"):
        for k in range(8):
            a.i(f"v_mov_b32 v{MW+k}, v{AC+k}")
        for k in range(8):
            a.i(f"{op} v{AC+k}, v{MW+k}")
        for k in range(8):
            a.i(f"v_add_f32 v{AC+k}, v{AC+k}, v{MW+k}")
    a.i(f"s_lshl_b32 s12, s{SW}, 8")
    a.i(f"s_add_u32 s12, s12, {MR}")
    a.i(f"v_lshlrev_b32 v8, 1, v{L16}")
    a.i("v_add_u32 v8, s12, v8")
    a.i("s_mov_b64 exec, 0xff")
    a.i(f"ds_write_b128 v8, {v(AC,4)}")
    a.i(f"ds_write_b128 v8, {v(AC+4,4)} offset:16")
    a.i("s_mov_b64 exec, -1")
    a.bar()
    a.i(f"s_cmp_eq_u32 s{SW}, 0")
    a.if_("mod0")
    a.i(f"v_lshrrev_b32 v8, 2, v{L16}")
    a.i(f"v_add_u32 v9, {MR}, v8")
    for k in range(8):
        a.i(f"ds_read_b32 v{MW+k}, v9 offset:{k*256}")
    a.i("s_mov_b32 s12, 0")
    a.i("s_sub_u32 s13, s2, 7")
    a.i("s_cmp_lt_u32 s13, 7")
    a.i("s_cselect_b32 s12, 1.0, s12")
    a.i("s_sub_u32 s13, s2, 28")
    a.i("s_cmp_lt_u32 s13, 7")
    a.i("s_cselect_b32 s12, 1.0, s12")
    a.i("s_lshl_b32 s13, s2, 9")
    a.i(f"s_add_u32 s13, s13, {MODG}")
    a.i("v_lshlrev_b32 v8, 1, v8")
    for k in (0, 2, 4, 6):
        a.i(f"v_add_f32 v{MW+k}, v{MW+k}, v{MW+k+1}")
    a.i(f"v_add_f32 v{MW}, v{MW}, v{MW+2}")
    a.i(f"v_add_f32 v{MW+4}, v{MW+4}, v{MW+6}")
    a.i(f"v_add_f32 v{MW}, v{MW}, v{MW+4}")
    a.i(f"v_cvt_pk_bf16_f32 v{MW}, 0, v{MW}")
    a.i(f"v_add_f32 v{MW}, s12, v{MW}")
    a.i(f"v_cvt_pk_bf16_f32 v{MW}, 0, v{MW}")
    a.i(f"v_mov_b32 v{MW+1}, s{STAG}")
    a.i(f"buffer_store_dwordx2 {v(MW,2)}, v8, {s(S_WS,4)}, s13 offen sc1")
    a.fi()
    a.st(2)
    a.fi()
    TSW = 12
    a.i(f"v_add_u32 v{TSW}, s{STS}, v{L16}")
    a.i(f"v_lshrrev_b32 v8, 2, v{T31}")
    a.i(f"v_xor_b32 v8, v8, v{HF}")
    a.i("v_and_b32 v8, 3, v8")
    a.i("v_lshlrev_b32 v8, 4, v8")
    a.i(f"v_lshl_add_u32 v8, v{T31}, 6, v8")
    a.i(f"v_add_u32 v8, s{STS}, v8")
    a.i("v_xor_b32 v9, 32, v8")
    a.i("s_mov_b32 s12, 0x3f803f80")

    def stats(q):
        for r in range(XR + 8 * q, XR + 8 * q + 8):
            f = r < XR + 2
            a.i(f"v_dot2_f32_bf16 v{4+(r&1)}, v{r}, s12, {0 if f else v(4+(r&1))}")
            a.i(f"v_dot2_f32_bf16 v{6+(r&1)}, v{r}, v{r}, {0 if f else v(6+(r&1))}")

    for q in range(7):
        r = XR + 8 * q
        a.i(f"ds_write_b128 v{TSW}, {v(r,4)}")
        a.i(f"ds_write_b128 v{TSW}, {v(r+4,4)} offset:1024")
        a.i(f"ds_read_b128 {v(r,4)}, v8")
        a.i(f"ds_read_b128 {v(r+4,4)}, v9")
        if q:
            stats(q - 1)
    a.st(3)
    GUV = 0
    a.i(f"v_lshrrev_b32 v10, 6, v{L16}")
    a.i("v_mul_u32_u24 v10, 3584, v10")
    a.i(f"v_lshl_add_u32 v{GUV}, v13, 4, v10")
    a.i(f"v_mov_b32 v10, {hex(OOB)}")
    a.i(f"v_cmp_gt_u32 vcc, {48*16}, v{L16}")
    a.i("v_cndmask_b32 v13, v10, v14, vcc")
    srd(a, S_WO, P_WO, 448 * 896)
    srd(a, S_WG, P_WG, 448 * 3584)
    srd(a, S_WU, P_WU, 448 * 3584)
    a.i(f"s_mul_i32 s{SGU}, s{SB}, 7")
    a.i(f"s_add_u32 s{SGU}, s{SGU}, s{SJJ}")
    a.i(f"s_lshl_b32 s{SGU}, s{SGU}, 8")
    a.i(f"s_mul_i32 s13, s{SKH}, {14*16*3584}")
    a.i(f"s_add_u32 s{SGU}, s{SGU}, s13")
    a.i(f"s_lshl_b32 s13, s{STT}, 6")
    a.i(f"s_add_u32 s{SGU}, s{SGU}, s13")
    a.i(f"s_cmp_eq_u32 s{SJJ}, 7")
    a.i(f"s_cselect_b32 s{SGU}, {hex(OOB)}, s{SGU}")
    a.i(f"s_lshl_b32 s14, s{SB}, 1")
    a.i(f"s_and_b32 s15, s{SJJ}, 1")
    a.i("s_add_u32 s83, s14, s15")
    a.i("s_mul_i32 s14, s83, 224")
    a.i(f"s_add_u32 s{SWO}, s14, s13")
    a.i(f"s_mul_i32 s14, s{SKH}, {8*28*896}")
    a.i(f"s_add_u32 s{SWO}, s{SWO}, s14")
    a.i(f"s_lshl_b32 s{SPT}, s{SM}, 2")
    a.i(f"s_lshr_b32 s14, s{SJJ}, 1")
    a.i(f"s_add_u32 s{SPT}, s{SPT}, s14")

    def prefetch():
        a.i(f"s_mov_b32 s14, s{SWO}")
        for i in range(16):
            a.i(f"buffer_load_dwordx4 {ag(A_WO+4*i,4)}, v{14 if i%2==0 else 13}, {s(S_WO,4)}, s14 offen")
            if i < 15:
                a.i(f"s_add_u32 s14, s14, {16*896 if i%2==0 else 12*896}")
        for p in (0, 8, 12, 13):
            gu_load(a, p, GUV, 14)

    a.i(f"s_cmp_eq_u32 s{SW}, 7")
    a.if_("w06", want=0)
    prefetch()
    a.fi()
    stats(6)
    a.i("v_add_f32 v4, v4, v5")
    a.i("v_add_f32 v5, v6, v7")
    allsum32(a, 4, 6)
    allsum32(a, 5, 6)
    a.i(f"v_lshlrev_b32 v8, 3, v{T31}")
    a.i(f"v_add_u32 v8, s{STS}, v8")
    a.i("ds_write_b64 v8, v[4:5]")
    a.i("v_xor_b32 v8, 0x2000, v8") if (TS & 0x2000) == 0 and (TS % 16384) == 0 else None
    assert TS % 16384 == 0
    a.bar(4)
    a.i("ds_read_b64 v[6:7], v8")
    a.i("v_add_f32 v4, v4, v6")
    a.i("v_add_f32 v5, v5, v7")
    RS, NB = 10, 11
    a.i(f"v_mul_f32 v{NB}, {f2u(1/448)}, v4")
    a.i(f"v_mul_f32 v6, v{NB}, v{NB}")
    a.i(f"v_mul_f32 v{RS}, {f2u(1/448)}, v5")
    a.i(f"v_sub_f32 v{RS}, v{RS}, v6")
    a.i(f"v_max_f32 v{RS}, 0, v{RS}")
    a.i(f"v_add_f32 v{RS}, {f2u(1e-5)}, v{RS}")
    a.i(f"v_rsq_f32 v{RS}, v{RS}")
    a.i(f"v_mul_f32_e64 v{NB}, -v{NB}, v{RS}")
    for r in range(XR, XR + 56, 2):
        for k in range(2):
            a.i(f"v_lshlrev_b32 v{4+2*k}, 16, v{r+k}")
            a.i(f"v_and_b32 v{5+2*k}, 0xffff0000, v{r+k}")
        for k in range(2):
            a.i(f"v_pk_fma_f32 {v(4+2*k,2)}, {v(4+2*k,2)}, v[10:11], v[10:11] op_sel:[0,0,1] op_sel_hi:[1,0,1]")
        for k in range(2):
            a.i(f"v_cvt_pk_bf16_f32 v{r+k}, v{4+2*k}, v{5+2*k}")
    a.st(6)
    a.flush()
    base = a.snapshot()
    a.i(f"s_cmp_eq_u32 s{SW}, 7")
    a.i("s_cbranch_scc1 p0_poll")
    a.known = set(a.known) | {"w06"}
    a.wait_vm_id(dma_last)
    a.i("s_branch p0_b0")
    sa_ = a.snapshot()
    a.restore(base)
    a.label("p0_poll", pad=False)
    a.vm = [e for e in a.vm if e[2] != "w06"]
    a.i(f"v_lshlrev_b32 v4, 4, v{T31}")
    a.i(f"v_mov_b32 v5, s{STAG}")
    a.i(f"s_mov_b32 s12, {MODG}")
    a.i(f"s_mov_b32 s13, {MODG+448*8}")
    a.i(f"s_mov_b32 s14, {FLAG0}")

    def mod_loads():
        for c in range(2):
            for p in range(4):
                a.i(f"buffer_load_dwordx4 {v(80+16*c+4*p,4)}, v{L16 if p<3 else 4}, {s(S_WS,4)}, s{12+c} offen offset:{p*1024} sc1")
        return a.i(f"buffer_load_dwordx4 v[112:115], v{L16}, {s(S_WS,4)}, s14 offen sc1")

    last = mod_loads()
    a.i(f"v_lshrrev_b32 v6, 1, v{L16}")
    a.i(f"v_add_u32 v6, {GS}, v6")
    a.i("v_lshrrev_b32 v7, 1, v4")
    a.i(f"v_add_u32 v7, {GS}, v7")
    a.poll(last, lambda: a.chk_tag([81 + 2 * k for k in range(16)] + [112, 113, 114, 115], 8, 5), mod_loads)
    for p in range(4):
        sa, g = 80 + 4 * p, 96 + 4 * p
        a.i(f"v_lshrrev_b32 v{g}, 16, v{g}")
        a.i(f"v_lshrrev_b32 v{sa+2}, 16, v{sa+2}")
        a.i(f"v_or_b32 v{sa}, v{sa}, v{g}")
        a.i(f"v_or_b32 v{sa+1}, v{sa+2}, v{g+2}")
        a.i(f"ds_write_b64 v{6 if p<3 else 7}, {v(sa,2)} offset:{p*512}")
    lg7 = list(a.lg)
    a.restore(sa_)
    a.lg = lg7
    a.hist = []
    a.label("p0_b0", pad=True)
    a.known = base[3]
    MLO, ONEL, WRD, GSR = 8, 9, 10, 11
    a.i(f"v_mov_b32 v{MLO}, 0xffff")
    a.i(f"v_mov_b32 v{ONEL}, 0x3f80")
    a.i(f"v_bfe_u32 v4, v{L16}, 6, 2")
    a.i(f"v_lshl_add_u32 v5, v{HF}, 3, v4")
    a.i(f"v_lshlrev_b32 v{WRD}, 6, v5")
    a.i(f"v_bfe_u32 v5, v{L16}, 4, 2")
    a.i(f"v_lshl_add_u32 v{WRD}, v5, 3, v{WRD}")
    a.i(f"v_bfe_u32 v6, v{L16}, 8, 1")
    a.i(f"v_lshl_add_u32 v{WRD}, v6, 5, v{WRD}")
    a.i(f"s_mul_i32 s12, s{SKH}, {14*3072}")
    a.i(f"v_add_u32 v{WRD}, s12, v{WRD}")
    a.i(f"s_mul_i32 s12, s{SKH}, {14*64}")
    a.i(f"s_add_u32 s12, s12, {GS}")
    a.i(f"v_lshlrev_b32 v{GSR}, 5, v{HF}")
    a.i(f"v_add_u32 v{GSR}, s12, v{GSR}")
    a.i(f"v_cmp_eq_u32_e64 {s(HFM,2)}, 1, v{HF}")
    a.i(f"s_mov_b32 s{SL2E}, {f2u(LOG2E)}")
    a.bar(7)
    a.i(f"s_cmp_eq_u32 s{SW}, 7")
    a.if_("w7b")
    a.vm = []
    prefetch()
    a.fi()
    a.vm = [(e[0], e[1], None) for e in a.vm if e[2] == "w7b"]
    TRB = 13

    accQ, accK, accV, GB = 80, 96, 112, 128

    def rdW(k):
        b = (k & 1) * 12
        for part in (1, 2, 0):
            for q in range(2):
                a.i(f"ds_read_b64_tr_b16 {ag(b+part*4+q*2,2)}, v{WRD} offset:{k*3072 + part*1024 + q*256}")

    def rdG(k):
        b = GB + (k & 1) * 8
        for q in range(2):
            a.i(f"ds_read_b128 {v(b+q*4,4)}, v{GSR} offset:{k*64+q*16}")

    def hcode(k):
        g = GB + (k & 1) * 8
        out = []
        for pp in range(2):
            for p in (2 * pp, 2 * pp + 1):
                x, t = XR + 4 * k + p, 4 + 2 * (p & 1)
                out.append(f"v_bitop3_b32 v{t}, v{x}, v{MLO}, 1.0 bitop3:0xea")
                out.append(f"v_bitop3_b32 v{t+1}, v{x}, v{MLO}, v{ONEL} bitop3:0xba")
            for p in (2 * pp, 2 * pp + 1):
                t = 4 + 2 * (p & 1)
                out.append(f"v_dot2_f32_bf16 v{t}, v{t}, v{g+2*p}, 0")
                out.append(f"v_dot2_f32_bf16 v{t+1}, v{t+1}, v{g+2*p+1}, 0")
            out.append(None)
            for p in (2 * pp, 2 * pp + 1):
                x, t = XR + 4 * k + p, 4 + 2 * (p & 1)
                out.append(f"v_cvt_pk_bf16_f32 v{x}, v{t}, v{t+1}")
        return out

    rdG(0)
    rdW(0)
    rdG(1)
    for t in hcode(0):
        if t:
            a.i(t)
    for k in range(14):
        if k + 1 < 14:
            rdW(k + 1)
        else:
            a.i(f"v_bfe_u32 v4, v{L16}, 6, 2")
            a.i(f"v_lshl_add_u32 v4, v{HF}, 2, v4")
            a.i(f"v_lshlrev_b32 v{TRB}, 6, v4")
            a.i(f"v_bfe_u32 v4, v{L16}, 4, 2")
            a.i(f"v_lshl_add_u32 v{TRB}, v4, 3, v{TRB}")
            a.i(f"v_bfe_u32 v4, v{L16}, 8, 1")
            a.i(f"v_lshl_add_u32 v4, v4, 5, v{TRB}")
            a.i(f"v_add_u32 v4, {PHI}, v4")
            for q in range(4):
                a.i(f"ds_read_b64_tr_b16 {ag(2*q,2)}, v4 offset:{q*512}")
        hc = hcode(k + 1) if k + 1 < 14 else []
        parts = [[], [], []]
        n = 0
        for t in hc:
            if t is None:
                n += 1
            else:
                parts[n].append(t)
        w = (k & 1) * 12
        h = XR + 4 * k
        c = lambda r: (v(r, 16) if k else "0")
        for t in parts[0]:
            a.i(t)
        a.i(f"{MF} {v(accK,16)}, {ag(w+4,4)}, {v(h,4)}, {c(accK)}")
        for t in parts[1]:
            a.i(t)
        a.i(f"{MF} {v(accV,16)}, {v(h,4)}, {ag(w+8,4)}, {c(accV)}")
        for t in parts[2]:
            a.i(t)
        if k + 2 < 14:
            rdG(k + 2)
        a.i(f"{MF} {v(accQ,16)}, {ag(w,4)}, {v(h,4)}, {c(accQ)}")
        if k & 1:
            gu_load(a, (k + 1) // 2, GUV)
    a.st(9)
    EXA = 10
    a.i(f"s_mul_i32 s12, s{STT}, 12288")
    a.i(f"s_add_u32 s12, s12, {EX}")
    a.i(f"v_add_u32 v{EXA}, s12, v{L16}")
    a.i(f"v_add_u32 v4, {IDN}, v{L16}")

    def ifelse(name, fk, fq, drop=()):
        a.flush()
        b0 = a.snapshot()
        a.i(f"s_cmp_eq_u32 s{SKH}, 0")
        a.i(f"s_cbranch_scc0 {name}_q")
        a.cur = "K"
        a.known = set(a.known) | {"K"}
        fk()
        a.flush()
        a.i(f"s_branch {name}_j")
        s1 = a.snapshot()
        a.restore(b0)
        a.label(f"{name}_q", pad=False)
        a.cur = "Q"
        a.known = set(a.known) | {"Q"}
        fq()
        a.flush()
        s2 = a.snapshot()
        a.label(f"{name}_j", pad=False)
        return s1, s2

    def join_lds(s1, s2):
        ids = {e[0] for e in s1[1]}
        a.vm = list(s1[0]) if len(s1[0]) >= len(s2[0]) else list(s2[0])
        a.lg = list(s1[1]) + [e for e in s2[1] if e[0] not in ids]
        a.sm = []
        a.known = s1[3] & s2[3]
        a.cur = None
        import copy
        h = []
        for q in s1[5][-24:] + s2[5][-24:]:
            q2 = copy.copy(q)
            q2.states = 0
            h.append(q2)
        a.hist = h

    def send_k():
        for g in range(4):
            a.i(f"ds_write_b128 v{EXA}, {v(accQ+4*g,4)} offset:{g*1024}")
        a.i("s_setprio 2")

    def send_q():
        for g in range(8):
            a.i(f"ds_write_b128 v{EXA}, {v(accK+4*g,4)} offset:{4096+g*1024}")

    join_lds(*ifelse("ex1", send_k, send_q))
    a.i(f"ds_read_b128 a[8:11], v4")
    a.i(f"ds_read_b128 a[12:15], v4 offset:1024")
    a.bar(10)

    def recv_k():
        for g in range(4):
            a.i(f"ds_read_b128 {v(80+4*g,4)}, v{EXA} offset:{4096+g*1024}")
        for g in range(4):
            a.i(f"ds_read_b128 {v(128+4*g,4)}, v{EXA} offset:{8192+g*1024}")
        a.wait(lg=4)

    def recv_q():
        for g in range(4):
            a.i(f"ds_read_b128 {v(96+4*g,4)}, v{EXA} offset:{g*1024}")
        a.wait(lg=0)

    join_lds(*ifelse("ex2", recv_k, recv_q))
    for p in range(8):
        a.i(f"v_pk_add_f32 {v(96+2*p,2)}, {v(96+2*p,2)}, {v(80+2*p,2)}")
    for p in range(8):
        a.i(f"v_cvt_pk_bf16_f32 v{80+p}, v{96+2*p}, v{97+2*p}")
    P, E, OUT = 96, 112, 128
    a.i(f"{MF} {v(P,16)}, a[0:3], v[80:83], 0")
    a.i(f"{MF} {v(P,16)}, a[4:7], v[84:87], {v(P,16)}")
    a.i(f"s_cmp_eq_u32 s{SKH}, 0")
    a.if_("K")
    a.i(f"v_cmp_eq_u32 vcc, 28, v{T31}")
    a.i("v_mov_b32 v4, 0x3f803f80")
    for p in range(8):
        a.i(f"v_pk_add_f32 {v(112+2*p,2)}, {v(112+2*p,2)}, {v(128+2*p,2)}")
    for p in range(8):
        a.i(f"v_cvt_pk_bf16_f32 v{88+p}, v{112+2*p}, v{113+2*p}")
        a.i(f"v_cndmask_b32 v{88+p}, v{88+p}, v4, vcc")
    a.fi()
    mx, mn, t, b0, b1, sm = 4, 5, 6, 8, 9, 10
    for m, op in ((mx, "v_max3_f32"), (mn, "v_min3_f32")):
        a.i(f"{op} v{m}, v{P}, v{P+1}, v{P+2}")
        a.i(f"{op} v{t}, v{P+12}, v{P+13}, v{P+14}")
        for k in (3, 5, 7, 9):
            a.i(f"{op} v{m}, v{m}, v{P+k}, v{P+k+1}")
        a.i(f"{op} v{m}, v{m}, v{P+11}, v{P+11}")
        a.i(f"{op} v{t}, v{t}, v{P+15}, v{m}")
        a.i(f"v_cndmask_b32_e64 v{m}, v{t}, v{m}, {s(HFM,2)}")
    a.i(f"v_mov_b32 v6, v{mx}")
    a.i(f"v_mov_b32 v7, v{mn}")
    a.i(f"v_permlane32_swap_b32 v{mx}, v6")
    a.i(f"v_permlane32_swap_b32 v{mn}, v7")
    a.i(f"v_max_f32 v{mx}, v{mx}, v6")
    a.i(f"v_min_f32 v{mn}, v{mn}, v7")
    for sign in (0, 1):
        m = mn if sign else mx
        a.i(f"v_mul_f32 v{b0}, {f2u(LOG2E if sign else -LOG2E)}, v{m}")
        a.i(f"v_mov_b32 v{b1}, 0xff800000")
        a.i(f"v_cndmask_b32_e64 v{b1}, v{b0}, v{b1}, {s(HFM,2)}")
        ng = " neg_lo:[0,1,0] neg_hi:[0,1,0]" if sign else ""
        for p in range(8):
            z = 0 if p < 6 else 1
            a.i(f"v_pk_fma_f32 {v(E+2*p,2)}, {v(P+2*p,2)}, {s(SL2E,2)}, {v(b0,2)} op_sel:[0,0,{z}] op_sel_hi:[1,0,{z}]{ng}")
        for r in range(16):
            a.i(f"v_exp_f32 v{E+r}, v{E+r}")
        a.i(f"v_pk_add_f32 v[10:11], {v(E,2)}, {v(E+2,2)}")
        a.i(f"v_pk_add_f32 v[6:7], {v(E+4,2)}, {v(E+6,2)}")
        for p in (4, 6):
            a.i(f"v_pk_add_f32 v[10:11], v[10:11], {v(E+2*p,2)}")
            a.i(f"v_pk_add_f32 v[6:7], v[6:7], {v(E+2*p+2,2)}")
        a.i("v_pk_add_f32 v[10:11], v[10:11], v[6:7]")
        a.i("v_add_f32 v10, v10, v11")
        allsum32(a, 10, 6)
        a.i("v_rcp_f32 v10, v10")
        for p in range(8):
            a.i(f"v_pk_mul_f32 {v(E+2*p,2)}, {v(E+2*p,2)}, v[10:11] op_sel_hi:[1,0]")
        for p in range(8):
            a.i(f"v_cvt_pk_bf16_f32 v{OUT+sign*8+p}, v{E+2*p}, v{E+2*p+1}")
    a.st(12)
    a.i(f"s_cmp_eq_u32 s{SKH}, 0")
    a.if_("K")
    for sign, acc in ((0, 96), (1, 112)):
        a.i(f"{MF} {v(acc,16)}, {v(OUT+sign*8,4)}, a[8:11], 0")
        a.i(f"{MF} {v(acc,16)}, {v(OUT+sign*8+4,4)}, a[12:15], {v(acc,16)}")
    a.i(f"s_lshl_b32 s12, s{STT}, 13")
    a.i(f"v_add_u32 v4, s12, v{L16}")
    for sign, acc in ((0, 96), (1, 112)):
        for p in range(8):
            a.i(f"v_cvt_pk_bf16_f32 v{128+sign*8+p}, v{acc+2*p}, v{acc+2*p+1}")
        a.i(f"{MF} {v(acc,16)}, {v(128+sign*8,4)}, v[88:91], 0")
        a.i(f"{MF} {v(acc,16)}, {v(128+sign*8+4,4)}, v[92:95], {v(acc,16)}")
    for g in range(8):
        a.i(f"ds_write_b128 v4, {v(96+4*g,4)} offset:{RED+g*1024}")
    a.fi()
    a.bar(13)
    a.i(f"s_lshl_b32 s12, s{SJ}, 2")
    a.i(f"s_add_u32 s12, s12, s{STT}")
    a.i("s_lshl_b32 s12, s12, 14")
    a.i(f"s_add_u32 s15, s12, {KVP}")
    a.i(f"s_cmp_eq_u32 s{SKH}, 0")
    a.if_("K")
    a.i(f"s_lshl_b32 s12, s{STT}, 11")
    a.i(f"v_add_u32 v4, s12, v{L16}")
    for src in range(4):
        for q in range(2):
            a.i(f"ds_read_b128 {v(96+8*src+4*q,4)}, v4 offset:{RED+src*8192+q*1024}")
    a.i(f"s_lshl_b32 s12, s{SM}, 10")
    a.i("s_add_u32 s12, s12, s15")
    for p in range(4):
        a.i(f"v_pk_add_f32 {v(96+2*p,2)}, {v(96+2*p,2)}, {v(104+2*p,2)}")
    for p in range(4):
        a.i(f"v_pk_add_f32 {v(112+2*p,2)}, {v(112+2*p,2)}, {v(120+2*p,2)}")
    for p in range(4):
        a.i(f"v_pk_add_f32 {v(96+2*p,2)}, {v(96+2*p,2)}, {v(112+2*p,2)}")
    for p in range(4):
        a.i(f"v_cvt_pk_bf16_f32 v{80+p}, v{96+2*p}, v{97+2*p}")
    a.i(f"buffer_store_dwordx4 v[80:83], v{L16}, {s(S_WS,4)}, s12 offen sc1")
    a.i("s_setprio 0")
    a.fi()
    a.st(15)
    if STOP <= 1:
        a.flush()
        a.i("s_branch fin")
        return

    a.i(f"s_lshl_b32 s12, s{SW}, 11")
    a.i(f"v_add_u32 v4, s12, v{L16}")
    a.i("v_add_u32 v5, 1024, v4")
    a.i(f"v_min_u32 v4, {671*16}, v4")
    a.i(f"v_min_u32 v5, {671*16}, v5")
    a.i(f"s_mov_b32 s13, {MODG+896*8}")

    def tab_loads():
        a.i(f"buffer_load_dwordx4 v[84:87], v4, {s(S_WS,4)}, s13 offen sc1")
        return a.i(f"buffer_load_dwordx4 v[88:91], v5, {s(S_WS,4)}, s13 offen sc1")

    tabl = tab_loads()
    a.i(f"v_bfe_u32 v6, v{L16}, 8, 1")
    a.i(f"v_xor_b32 v6, s{SKH}, v6")
    a.i(f"v_lshl_add_u32 v6, v6, 5, v{TRB}")
    a.i(f"v_add_u32 v6, s{STS}, v6")

    def wo_tr(i):
        r = A_WO + 8 * i
        a.i(f"ds_write_b128 v{TSW}, {ag(r,4)}")
        a.i(f"ds_write_b128 v{TSW}, {ag(r+4,4)} offset:1024")
        for q in range(4):
            a.i(f"ds_read_b64_tr_b16 {ag(r+2*q,2)}, v6 offset:{q*512}")

    for i in range(4):
        wo_tr(i)
    a.i(f"s_lshl_b32 s12, s{SKH}, 13")
    a.i("s_add_u32 s14, s15, s12")
    a.i("s_add_u32 s15, s14, 4096")

    def kv_loads():
        for i in range(8):
            r = a.i(f"buffer_load_dwordx4 {v(96+4*i,4)}, v{L16}, {s(S_WS,4)}, s{14+i//4} offen offset:{(i%4)*1024} sc1")
        return r

    kvl = kv_loads()
    for p in (9, 10, 11):
        gu_load(a, p, GUV)
    for i in range(4, 8):
        wo_tr(i)
    a.i(f"v_mov_b32 v7, s{STAG}")
    a.poll(tabl, lambda: a.chk_tag([85, 87, 89, 91], 8, 7), tab_loads)
    for k in range(4):
        a.i(f"v_mov_b32 v{92+k}, 0")
    a.i(f"v_min_u32 v8, 27, v{T31}")
    a.i("v_mul_u32_u24 v8, 80, v8")
    a.i(f"v_add_u32 v8, {TABH+64}, v8")
    a.i("ds_write_b128 v8, v[92:95]")
    for vi, r in ((4, 84), (5, 88)):
        a.i(f"v_lshrrev_b32 v8, 1, v{vi}")
        a.i(f"v_add_u32 v8, {TABF}, v8")
        a.i(f"v_mov_b32 v{r+1}, v{r+2}")
        a.i(f"ds_write_b64 v8, {v(r,2)}")
        a.i(f"v_lshrrev_b32 v{r+3}, 16, v{r}")
        a.i(f"v_or_b32 v{r+3}, v{r+3}, v{r+2}")
        a.i(f"v_lshrrev_b32 v8, 4, v{vi}")
        a.i("v_cmp_le_u32 vcc, 448, v8")
        a.i("v_subrev_u32 v9, 224, v8")
        a.i("v_subrev_u32 v10, 448, v8")
        a.i("v_cndmask_b32 v9, v9, v10, vcc")
        a.i("v_cndmask_b32_e64 v10, 32, 0, vcc")
        a.i("v_lshrrev_b32 v11, 3, v9")
        a.i("v_mul_u32_u24 v11, 80, v11")
        a.i("v_add_u32 v10, v10, v11")
        a.i("v_bfe_u32 v11, v9, 1, 1")
        a.i("v_lshl_add_u32 v10, v11, 4, v10")
        a.i("v_bfe_u32 v11, v9, 2, 1")
        a.i("v_lshl_add_u32 v10, v11, 3, v10")
        a.i("v_and_b32 v11, 1, v9")
        a.i("v_lshl_add_u32 v10, v11, 2, v10")
        a.i("v_mov_b32 v11, 2240")
        a.i("v_cmp_le_u32 vcc, 224, v8")
        a.i("v_cndmask_b32 v10, v11, v10, vcc")
        a.i(f"v_add_u32 v10, {TABH}, v10")
        a.i(f"ds_write_b32 v10, v{r+3}")
    a.st(16)
    a.poll(kvl, lambda: a.chk_sent([96 + 4 * i for i in range(8)], 8), kv_loads)
    a.st(17)
    for i in range(8):
        for p in range(4):
            a.i(f"v_dot2_f32_bf16 v{80+2*p}, v{96+4*i+p}, s{SONL}, {v(80+2*p) if i else 0}")
            a.i(f"v_dot2_f32_bf16 v{81+2*p}, v{96+4*i+p}, s{SONH}, {v(81+2*p) if i else 0}")
    a.i(f"s_lshl_b32 s12, s{SW}, 10")
    a.i(f"s_add_u32 s12, s12, {SUM}")
    a.i(f"v_add_u32 v4, s12, v{L16}")
    for p in range(4):
        a.i(f"v_cvt_pk_bf16_f32 v{88+p}, v{80+2*p}, v{81+2*p}")
    a.i("ds_write_b128 v4, v[88:91]")
    a.bar(18)
    a.i(f"s_cmp_eq_u32 s{SKH}, 0")
    a.if_("Q", want=0)
    for i in range(8):
        a.i(f"ds_read_b128 {v(96+4*i,4)}, v{L16} offset:{SUM+i*1024}")
    a.i(f"s_lshl_b32 s12, s{SM}, 2")
    a.i(f"s_add_u32 s12, s12, s{STT}")
    a.i("s_lshl_b32 s12, s12, 4")
    a.i(f"s_add_u32 s12, s12, s{SJ}")
    a.i("s_lshl_b32 s12, s12, 11")
    a.i(f"s_add_u32 s12, s12, {OO}")
    for i in range(8):
        a.i(f"{MF} v[80:95], {v(96+4*i,4)}, {v(128+4*(i&3),4)}, {'v[80:95]' if i else 0}")
    a.i("v_mov_b32 v4, v92")
    a.i("v_mov_b32 v5, v92")
    a.i("v_permlane32_swap_b32 v4, v5")
    a.i(f"v_add_f32 v4, {f2u(1e-6)}, v5")
    a.i("v_rcp_f32 v4, v4")
    for blk in range(2):
        for p in range(4):
            r = 80 + blk * 8 + 2 * p
            a.i(f"v_pk_mul_f32 {v(r,2)}, {v(r,2)}, v[4:5] op_sel_hi:[1,0]")
        for p in range(4):
            r = 80 + blk * 8 + 2 * p
            a.i(f"v_cvt_pk_bf16_f32 v{96+blk*4+p}, v{r}, v{r+1}")
        a.i(f"buffer_store_dwordx4 {v(96+blk*4,4)}, v{L16}, {s(S_WS,4)}, s12 offen offset:{blk*1024} sc1")
    a.fi()
    a.st(20)
    if STOP <= 2:
        a.flush()
        a.i("s_branch fin")
        return

    GK, GSN = 8, 9
    a.i(f"v_bfe_u32 v6, v{L16}, 8, 1")
    a.i(f"v_lshl_add_u32 v6, v6, 10, v{TRB}")
    a.i(f"s_lshl_b32 s12, s{SKH}, 5")
    a.i(f"s_add_u32 s12, s12, s{STS}")
    a.i(f"v_add_u32 v{GK}, s12, v6")
    a.i(f"v_xor_b32 v{GSN}, 32, v{GK}")

    def gu_tr(p):
        r, f = GU_RAW[p], GU_FIN[p]
        a.i(f"ds_write_b128 v{TSW}, {R4(r)}")
        a.i(f"ds_write_b128 v{TSW}, {R4(off(r,4))} offset:1024")
        for q in range(2):
            a.i(f"ds_read_b64_tr_b16 {R2(f,2*q)}, v{GK} offset:{q*512}")
        for q in range(2):
            a.i(f"ds_read_b64_tr_b16 {R2(f,4+2*q)}, v{GSN} offset:{q*512}")

    a.i("s_mul_i32 s12, s83, 112")
    a.i(f"s_lshl_b32 s13, s{STT}, 5")
    a.i("s_add_u32 s12, s12, s13")
    a.i(f"s_lshl_b32 s13, s{SKH}, 4")
    a.i("s_add_u32 s12, s12, s13")
    SC0, SXO = 72, 73
    a.i(f"s_lshl_b32 s{SC0}, s12, 2")
    a.i(f"s_mul_i32 s{SXO}, s{SPT}, {32*896}")
    a.i("s_lshl_b32 s12, s12, 1")
    a.i(f"s_add_u32 s{SXO}, s{SXO}, s12")
    a.i(f"v_mul_u32_u24 v14, 896, v{T31}")
    a.i(f"v_lshl_add_u32 v10, v{HF}, 3, v14")
    a.i(f"buffer_load_dwordx2 v[4:5], v10, {s(S_X,4)}, s{SXO} offen")
    a.i(f"buffer_load_dwordx2 v[6:7], v10, {s(S_X,4)}, s{SXO} offen offset:16")
    for p in range(0, 6):
        gu_tr(p)
    a.i(f"s_lshl_b32 s12, s{SPT}, 3")
    a.i(f"s_add_u32 s12, s12, s{SW}")
    a.i("s_lshl_b32 s12, s12, 12")
    a.i(f"s_add_u32 s13, s12, {OO}")

    def o_loads():
        for i in range(4):
            r = a.i(f"buffer_load_dwordx4 {v(112+4*i,4)}, v{L16}, {s(S_WS,4)}, s13 offen offset:{i*1024} sc1")
        return r

    ol = o_loads()
    for p in range(6, 12):
        gu_tr(p)
    a.i(f"s_lshl_b32 s12, s{SW}, 12")
    a.i(f"v_add_u32 v10, s12, v{L16}")
    a.st(21)
    a.poll(ol, lambda: a.chk_sent([112 + 4 * i for i in range(4)], 11), o_loads)
    for i in range(4):
        a.i(f"ds_write_b128 v10, {v(112+4*i,4)} offset:{OST+i*1024}")
    a.i(f"s_lshl_b32 s12, s{SKH}, 14")
    a.i(f"v_add_u32 v10, s12, v{L16}")
    a.i(f"v_lshlrev_b32 v11, 4, v{HF}")
    a.i(f"v_add_u32 v11, s{SC0}, v11")
    a.i(f"v_add_u32 v11, {TABF}, v11")
    a.bar(22)
    for i in range(8):
        a.i(f"ds_read_b128 {v(80+4*i,4)}, v10 offset:{OST+i*1024}")
    GA, G2 = 112, 120
    for k in range(16):
        a.i(f"{MF} v[128:143], {ag(A_WO+4*k,4)}, {v(80+4*(k%8),4)}, {'v[128:143]' if k else 0}")
        if k + 8 < 16:
            a.i(f"ds_read_b128 {v(80+4*(k%8),4)}, v10 offset:{OST+(k+8)*1024}")
        if k == 8:
            for q in range(2):
                a.i(f"ds_read_b128 {v(GA+4*q,4)}, v11 offset:{q*32}")
                a.i(f"ds_read_b128 {v(G2+4*q,4)}, v11 offset:{3584+q*32}")
    a.i(f"s_lshl_b32 s12, s{SW}, 11")
    a.i(f"s_add_u32 s12, s12, {PX3}")
    a.i(f"v_add_u32 v10, s12, v{L16}")
    a.i("ds_write_b128 v10, v[136:139]")
    a.i("ds_write_b128 v10, v[140:143] offset:1024")
    assert PX3 % 16384 == 0
    a.i("v_xor_b32 v10, 0x2000, v10")
    a.i(f"s_mul_i32 s12, s{SPT}, 28")
    a.i("s_mul_i32 s13, s83, 7")
    a.i("s_add_u32 s12, s12, s13")
    a.i(f"s_lshl_b32 s13, s{STT}, 1")
    a.i("s_add_u32 s12, s12, s13")
    a.i(f"s_add_u32 s12, s12, s{SKH}")
    a.i("s_lshl_b32 s12, s12, 10")
    a.i(f"s_add_u32 s12, s12, {YY}")
    a.i(f"s_add_u32 s13, s{SXO}, {X1}")
    a.i(f"v_lshl_add_u32 v14, v{HF}, 4, v14")
    a.i(f"v_lshlrev_b32 v11, 3, v{T31}")
    a.i(f"v_add_u32 v11, {STP}, v11")
    a.bar(24)
    a.i(f"s_cmp_eq_u32 s{SW}, 7")
    a.if_("e06", want=0)
    a.i("ds_read_b128 v[136:139], v10")
    a.i("ds_read_b128 v[140:143], v10 offset:1024")
    for p in range(4):
        a.i(f"v_lshlrev_b32 v{80+2*p}, 16, v{4+p}")
        a.i(f"v_and_b32 v{81+2*p}, 0xffff0000, v{4+p}")
    for p in range(4):
        a.i(f"v_pk_add_f32 {v(128+2*p,2)}, {v(128+2*p,2)}, {v(136+2*p,2)}")
    for p in range(4):
        a.i(f"v_pk_fma_f32 {v(80+2*p,2)}, {v(GA+2*p,2)}, {v(128+2*p,2)}, {v(80+2*p,2)}")
    for p in range(4):
        a.i(f"v_cvt_pk_bf16_f32 v{88+p}, v{80+2*p}, v{81+2*p}")
    for p in range(4):
        a.i(f"v_lshlrev_b32 v{80+2*p}, 16, v{88+p}")
        a.i(f"v_and_b32 v{81+2*p}, 0xffff0000, v{88+p}")
    for p in range(4):
        a.i(f"v_pk_mul_f32 {v(96+2*p,2)}, {v(80+2*p,2)}, {v(G2+2*p,2)}")
    for p in range(4):
        a.i(f"v_cvt_pk_bf16_f32 v{92+p}, v{96+2*p}, v{97+2*p}")
    a.i(f"buffer_store_dwordx4 v[92:95], v{L16}, {s(S_WS,4)}, s12 offen sc1")
    a.i("s_mov_b32 s14, 0x3f803f80")
    for p in range(4):
        a.i(f"v_dot2_f32_bf16 v4, v{88+p}, s14, {'v4' if p else 0}")
        a.i(f"v_dot2_f32_bf16 v5, v{88+p}, v{88+p}, {'v5' if p else 0}")
    allsum32(a, 4, 6)
    allsum32(a, 5, 7)
    a.i(f"s_lshl_b32 s14, s{SW}, 8")
    a.i("v_add_u32 v6, s14, v11")
    a.i("ds_write_b64 v6, v[4:5]")
    a.i("v_permlane32_swap_b32 v88, v90")
    a.i("v_permlane32_swap_b32 v89, v91")
    a.i(f"buffer_store_dwordx4 v[88:91], v14, {s(S_WS,4)}, s13 offen sc1")
    a.fi()
    a.bar(26)
    a.i(f"s_cmp_eq_u32 s{SW}, 7")
    a.if_("e7")
    for k in range(7):
        a.i(f"ds_read_b64 {v(80+2*k,2)}, v11 offset:{k*256}")
    a.i(f"s_lshl_b32 s12, s{SPT}, 10")
    a.i("s_lshl_b32 s13, s83, 3")
    a.i("s_add_u32 s12, s12, s13")
    a.i(f"s_add_u32 s12, s12, {STATS}")
    a.i(f"v_lshlrev_b32 v6, 5, v{T31}")
    a.i("v_pk_add_f32 v[80:81], v[80:81], v[82:83]")
    a.i("v_pk_add_f32 v[84:85], v[84:85], v[86:87]")
    a.i("v_pk_add_f32 v[88:89], v[88:89], v[90:91]")
    a.i("v_pk_add_f32 v[80:81], v[80:81], v[84:85]")
    a.i("v_pk_add_f32 v[88:89], v[88:89], v[92:93]")
    a.i("v_pk_add_f32 v[80:81], v[80:81], v[88:89]")
    a.i(f"buffer_store_dwordx2 v[80:81], v6, {s(S_WS,4)}, s12 offen sc1")
    a.fi()

    VTAG = 14
    a.i(f"v_mov_b32 v{VTAG}, s{STAG}")

    def post(soff):
        a.i("s_mov_b64 exec, 1")
        a.i(f"buffer_store_dword v{VTAG}, v{L16}, {s(S_WS,4)}, s{soff} offen sc1")
        a.i("s_mov_b64 exec, -1")

    SFX = 74
    a.i(f"s_lshl_b32 s{SFX}, s{SM}, 4")
    a.i(f"s_add_u32 s{SFX}, s{SFX}, s{SJ}")
    a.i(f"s_lshl_b32 s{SFX}, s{SFX}, 3")
    a.i(f"s_add_u32 s{SFX}, s{SFX}, s{SW}")
    a.i(f"s_lshl_b32 s{SFX}, s{SFX}, 2")
    a.i(f"s_add_u32 s{SFX}, s{SFX}, {FLAGX}")
    a.i(f"s_cmp_eq_u32 s{SJJ}, 7")
    if STOP <= 3:
        a.i("s_cmp_eq_u32 s2, s2")
    a.if_("jj7")
    a.force_wait(vm=0)
    post(SFX)
    a.flush()
    a.i("s_branch fin")
    a.fi()
    a.vm = [e for e in a.vm if e[2] != "jj7"]
    if STOP <= 3:
        return
    gate_up(a, GK, GSN, TSW, gu_tr, post, SFX, VTAG)


def gate_up(a, GK, GSN, TSW, gu_tr, post, SFX, VTAG):
    SY = 75
    a.i(f"s_mul_i32 s{SY}, s{SM}, {112*1024}")
    a.i(f"s_lshl_b32 s12, s{SW}, 10")
    a.i(f"s_add_u32 s{SY}, s{SY}, s12")
    a.i(f"s_add_u32 s{SY}, s{SY}, {YY}")
    YW = 10
    a.i(f"v_add_u32 v{YW}, s12, v{L16}")
    BATCH = {0: (range(0, 4), 112), 1: (range(4, 7), 128), 2: (range(7, 11), 112), 3: (range(11, 14), 128)}

    def y_loads(b):
        qs, r0 = BATCH[b]
        for n, q in enumerate(qs):
            a.i(f"s_add_u32 s12, s{SY}, {q*8192}")
            r = a.i(f"buffer_load_dwordx4 {v(r0+4*n,4)}, v{L16}, {s(S_WS,4)}, s12 offen sc1")
        return r

    yl = {}

    def y_stage(b, t):
        qs, r0 = BATCH[b]
        a.poll(yl[b], lambda: a.chk_sent([r0 + 4 * n for n in range(len(qs))], t), lambda: y_loads(b))
        if b == 2:
            a.i(f"v_add_u32 v{YW}, {7*8192}, v{YW}")
        for n, q in enumerate(qs):
            a.i(f"ds_write_b128 v{YW}, {v(r0+4*n,4)} offset:{(q if b<2 else q-7)*8192}")

    gu_tr(12)
    yl[0] = y_loads(0)
    yl[1] = y_loads(1)
    gu_tr(13)
    a.i(f"v_bfe_u32 v4, v{L16}, 4, 1")
    a.i(f"v_lshlrev_b32 v4, 5, v4")
    a.i(f"v_lshl_add_u32 v4, v{HF}, 4, v4")
    a.i(f"v_bfe_u32 v5, v{L16}, 5, 1")
    a.i(f"v_bfe_u32 v6, v{L16}, 8, 1")
    a.i("v_cmp_eq_u32 vcc, v5, v6")
    a.i("v_cndmask_b32 v4, 64, v4, vcc")
    a.i(f"s_mul_i32 s12, s{SKH}, {14*80}")
    a.i(f"s_add_u32 s12, s12, {TABH}")
    a.i("v_add_u32 v4, s12, v4")
    for k in range(6):
        a.i(f"ds_read_b128 {v(88+4*k,4)}, v4 offset:{k*80}")
    for k in range(14):
        f = GU_FIN[k]
        A = v(88 + 4 * (k % 6), 4)
        a.i(f"{MF16} v[80:83], {A}, {R4(f)}, {'v[80:83]' if k else 0}")
        a.i(f"{MF16} v[84:87], {A}, {R4(off(f,4))}, {'v[84:87]' if k else 0}")
        if k + 6 < 14:
            a.i(f"ds_read_b128 {A}, v4 offset:{(k+6)*80}")
    a.i(f"v_lshlrev_b32 v5, 3, v{T31}")
    a.i(f"v_add_u32 v5, s{STS}, v5")
    a.i("s_mov_b64 exec, 0xffff")
    for q in range(4):
        a.i(f"ds_write_b64 v5, {v(80+2*q,2)} offset:{q*128}")
    a.i("s_mov_b64 exec, -1")
    a.st(27)
    y_stage(0, 4)
    post(SFX)
    yl[2] = y_loads(2)
    YRD, PXA, PXB = 2, 3, 4
    a.i(f"v_mov_b32 v6, v{T31}")
    a.i(f"v_mov_b32 v7, v{HF}")
    a.i(f"s_mul_i32 s12, s{SKH}, {14*1024}")
    a.i(f"v_add_u32 v{YRD}, s12, v{L16}")
    a.i(f"s_lshl_b32 s12, s{SW}, 12")
    a.i(f"s_add_u32 s13, s12, {PX}")
    a.i(f"v_add_u32 v{PXA}, s13, v{L16}")
    a.i("s_xor_b32 s12, s12, 0x4000")
    a.i(f"s_add_u32 s13, s12, {PX}")
    a.i(f"v_add_u32 v{PXB}, s13, v{L16}")
    SAI = 73
    a.i(f"s_mul_i32 s12, s{SB}, 7")
    a.i(f"s_add_u32 s12, s12, s{SJJ}")
    a.i("s_lshl_b32 s12, s12, 3")
    a.i(f"s_lshl_b32 s13, s{STT}, 1")
    a.i("s_add_u32 s12, s12, s13")
    a.i(f"s_add_u32 s12, s12, s{SKH}")
    a.i(f"s_mul_i32 s13, s{SM}, 448")
    a.i("s_add_u32 s13, s13, s12")
    a.i("s_lshl_b32 s13, s13, 10")
    a.i(f"s_add_u32 s{SAI}, s13, {ACT}")
    SAF = 72
    a.i(f"s_lshl_b32 s13, s{SM}, 9")
    a.i("s_add_u32 s13, s13, s12")
    a.i("s_lshl_b32 s13, s13, 2")
    a.i(f"s_add_u32 s{SAF}, s13, {AFLAG}")
    a.i("v_lshlrev_b32 v11, 5, v6")
    a.i("v_lshl_add_u32 v11, v7, 10, v11")
    SST = 83
    a.i(f"s_lshl_b32 s{SST}, s{SM}, 12")
    a.i(f"s_add_u32 s{SST}, s{SST}, {STATS}")

    def st_loads():
        for k in range(4):
            r = a.i(f"buffer_load_dwordx4 {v(144+4*k,4)}, v11, {s(S_WS,4)}, s{SST} offen offset:{(k>>1)*2048+(k&1)*16} sc1")
        return r

    srd(a, S_WD, P_WD, 1792 * 896)
    srd(a, S_OUT, P_OUT, 2048 * 896)
    WDV = 0
    a.i(f"v_lshrrev_b32 v{WDV}, 7, v{L16}")
    a.i(f"v_mul_u32_u24 v{WDV}, 896, v{WDV}")
    a.i(f"v_and_b32 v8, 0x70, v{L16}")
    a.i(f"v_add_u32 v{WDV}, v{WDV}, v8")
    SWD = 80
    a.i(f"s_mul_i32 s{SWD}, s{SW}, {224*896}")
    a.i(f"s_lshl_b32 s12, s{SJJ}, 7")
    a.i(f"s_add_u32 s{SWD}, s{SWD}, s12")
    SSL = 81
    a.i(f"s_lshl_b32 s{SSL}, s{SW}, 11")
    SLOT = {}
    for i in range(14):
        SLOT[i] = [TS, 0, 16384, 32768, 49152, 65536][i % 6] if i < 12 else 81920 + (i - 12) * 16384
    dtag = {}

    def wd_dma(i):
        for h in range(2):
            a.i(f"s_add_u32 m0, s{SSL}, {SLOT[i] + h*1024}")
            a.i(f"s_add_u32 s12, s{SWD}, {(i*16+h*8)*896}")
            dtag[i] = a.i(f"buffer_load_dwordx4 v{WDV}, {s(S_WD,4)}, s12 offen lds")

    WDR, WDR2 = 8, 9
    a.i(f"v_bfe_u32 v12, v{L16}, 6, 2")
    a.i("v_lshl_add_u32 v12, v7, 2, v12")
    a.i(f"v_lshlrev_b32 v{WDR}, 7, v12")
    a.i(f"v_bfe_u32 v12, v{L16}, 4, 2")
    a.i(f"v_lshl_add_u32 v{WDR}, v12, 3, v{WDR}")
    a.i(f"v_bfe_u32 v12, v{L16}, 8, 1")
    a.i(f"v_lshl_add_u32 v{WDR}, v12, 5, v{WDR}")
    a.i(f"v_add_u32 v{WDR}, s{SSL}, v{WDR}")
    a.i(f"v_add_u32 v{WDR2}, {65536+16384}, v{WDR}")

    def wd_rd(i):
        a.wait_vm_id(dtag[i])
        f = GU_FIN[i]
        o = SLOT[i]
        base = WDR
        if o >= 65536:
            base, o = WDR2, o - 65536 - 16384
            if o < 0:
                base, o = None, None
        if base is None:
            a.i(f"v_add_u32 v12, 65536, v{WDR}")
            base, o = 12, 0
        if o > 65535 - 2048:
            a.i(f"v_add_u32 v12, {SLOT[i]}, v{WDR}")
            base, o = 12, 0
        for nt in range(2):
            for q in range(2):
                a.i(f"ds_read_b64_tr_b16 {R2(f,4*nt+2*q)}, v{base} offset:{o + nt*64 + q*1024}")

    a.bar(28)
    stl = st_loads()
    KA, SA, TMP, T8, OUTR = 80, 96, 144, 112, 120
    UBE, UBO, SF = 72, 76, 80
    VE = (140, 141, 142, 143)
    C0, C1 = 12, 13

    def yrd(tt, ks):
        n = tt * 14 + ks
        a.i(f"ds_read_b128 {ag(32+4*(n%6),4)}, v{YRD} offset:{(tt&1)*28672 + ks*1024}")

    def mf(tt, ks, which):
        n = tt * 14 + ks
        f = GU_FIN[ks]
        acc = KA if which == "K" else SA
        A = R4(f) if which == "K" else R4(off(f, 4))
        a.i(f"{MF} {v(acc,16)}, {A}, {ag(32+4*(n%6),4)}, {v(acc,16) if ks else 0}")

    def ub_final():
        a.i("v_xor_b32 v12, 0x2000, v5")
        a.i("ds_read_b64 v[140:141], v5")
        a.i("ds_read_b64 v[142:143], v12 offset:256")
        yield
        a.i("v_pk_add_f32 v[140:141], v[140:141], v[142:143]")
        a.i("v_cvt_pk_bf16_f32 v142, v140, v141")
        a.i("v_lshlrev_b32 v143, 16, v142")
        a.i("v_and_b32 v12, 0xffff0000, v142")
        yield
        a.i("v_sub_f32 v140, v140, v143")
        a.i("v_sub_f32 v141, v141, v12")
        a.i("v_cvt_pk_bf16_f32 v140, v140, v141")
        a.i("v_and_b32 v141, 0xffff, v142")
        yield
        a.i("v_lshl_or_b32 v141, v140, 16, v141")
        a.i("v_lshrrev_b32 v140, 16, v140")
        a.i("v_or_b32 v140, v140, v12")
        yield
        for n, r in enumerate((141, 142, 140)):
            a.i(f"v_cndmask_b32_e64 v12, v{r}, 0, {s(HFM,2)}")
            a.i(f"v_accvgpr_write_b32 a{UBE+n}, v12")
            a.i(f"v_cndmask_b32_e64 v12, 0, v{r}, {s(HFM,2)}")
            a.i(f"v_accvgpr_write_b32 a{UBO+n}, v12")
            yield
        a.i(f"v_accvgpr_write_b32 a{UBE+3}, 0")
        a.i(f"v_accvgpr_write_b32 a{UBO+3}, 0")
        yield

    def stats_final():
        a.poll(stl, lambda: a.chk_sent([144 + 2 * k for k in range(8)], 12), st_loads)
        yield
        for pr in range(2):
            b = 144 + 8 * pr
            a.i(f"v_pk_add_f32 {v(b,2)}, {v(b,2)}, {v(b+2,2)}")
            a.i(f"v_pk_add_f32 {v(b+4,2)}, {v(b+4,2)}, {v(b+6,2)}")
            a.i(f"v_pk_add_f32 {v(b,2)}, {v(b,2)}, {v(b+4,2)}")
            a.i(f"v_mul_f32 v{b}, {f2u(-1/448)}, v{b}")
            yield
            a.i(f"v_mul_f32 v{b+1}, {f2u(1/448)}, v{b+1}")
            a.i(f"v_fma_f32 v{b+1}, -v{b}, v{b}, v{b+1}")
            a.i(f"v_max_f32 v{b+1}, 0, v{b+1}")
            a.i(f"v_add_f32 v{b+1}, {f2u(1e-5)}, v{b+1}")
            yield
            e0, e1 = VE[2 * pr], VE[2 * pr + 1]
            a.i(f"v_mov_b32 v{e0}, v{b+1}")
            a.i(f"v_mov_b32 v{e1}, v{b+1}")
            a.i(f"v_sqrt_f32 v{b+1}, v{b+1}")
            a.i(f"v_permlane32_swap_b32 v{e0}, v{e1}")
            yield
            a.i(f"v_cvt_pk_bf16_f32 v{b+2}, v{b}, v{b+1}")
            a.i(f"v_lshlrev_b32 v{b+3}, 16, v{b+2}")
            a.i(f"v_and_b32 v{b+4}, 0xffff0000, v{b+2}")
            a.i(f"v_sub_f32 v{b+5}, v{b}, v{b+3}")
            yield
            a.i(f"v_sub_f32 v{b+6}, v{b+1}, v{b+4}")
            a.i(f"v_cvt_pk_bf16_f32 v{b+5}, v{b+5}, v{b+6}")
            a.i(f"v_lshrrev_b32 v{b}, 16, v{b+3}")
            a.i(f"v_or_b32 v{b}, v{b}, v{b+3}")
            yield
            a.i(f"v_and_b32 v{b+1}, 0xffff, v{b+5}")
            a.i(f"v_or_b32 v{b+1}, v{b+1}, v{b+4}")
            a.i(f"v_lshrrev_b32 v{b+2}, 16, v{b+4}")
            a.i(f"v_and_b32 v{b+5}, 0xffff0000, v{b+5}")
            yield
            a.i(f"v_or_b32 v{b+2}, v{b+2}, v{b+5}")
            for n in range(3):
                a.i(f"v_accvgpr_write_b32 a{SF+4*pr+n}, v{b+n}")
            a.i(f"v_accvgpr_write_b32 a{SF+4*pr+3}, 0")
            yield

    stag = {}

    def epi(tt):
        ub = UBO if tt & 1 else UBE
        a.i(f"{MF} {v(TMP,16)}, {ag(ub,4)}, {ag(SF+4*(tt>>1),4)}, {v(TMP,16)}")
        a.i(f"v_rsq_f32 v{C1}, v{VE[tt]}")
        yield
        a.i(f"v_mul_f32 v{C0}, {f2u(-GC1)}, v{C1}")
        a.i(f"v_mul_f32 v{T8}, v{C1}, v{C1}")
        a.i(f"v_mul_f32 v{C1}, v{C1}, v{T8}")
        a.i(f"v_mul_f32 v{C1}, {f2u(-GC2)}, v{C1}")
        yield
        yield
        g, u = TMP, TMP + 8
        for p in range(4):
            a.i(f"v_pk_mul_f32 {v(T8+2*p,2)}, {v(g+2*p,2)}, {v(g+2*p,2)}")
        yield
        for p in range(4):
            a.i(f"v_pk_fma_f32 {v(T8+2*p,2)}, {v(T8+2*p,2)}, v[12:13], v[12:13] op_sel:[0,1,0] op_sel_hi:[1,1,0]")
        yield
        for p in range(4):
            a.i(f"v_pk_mul_f32 {v(T8+2*p,2)}, {v(T8+2*p,2)}, {v(g+2*p,2)}")
        yield
        for p in range(4):
            a.i(f"v_exp_f32 v{T8+2*p}, v{T8+2*p}")
            a.i(f"v_exp_f32 v{T8+2*p+1}, v{T8+2*p+1}")
            a.i(f"v_pk_mul_f32 {v(u+2*p,2)}, {v(u+2*p,2)}, {v(g+2*p,2)}")
            yield
        e = VE[tt]
        z = e & 1
        for p in range(4):
            a.i(f"v_pk_fma_f32 {v(T8+2*p,2)}, {v(T8+2*p,2)}, {v(e-z,2)}, {v(e-z,2)} op_sel:[0,{z},{z}] op_sel_hi:[1,{z},{z}]")
        yield
        for p in range(4):
            a.i(f"v_rcp_f32 v{T8+2*p}, v{T8+2*p}")
            a.i(f"v_rcp_f32 v{T8+2*p+1}, v{T8+2*p+1}")
            yield
        for p in range(4):
            a.i(f"v_pk_mul_f32 {v(T8+2*p,2)}, {v(T8+2*p,2)}, {v(u+2*p,2)}")
        yield
        for p in range(4):
            a.i(f"v_cvt_pk_bf16_f32 v{OUTR+p}, v{T8+2*p}, v{T8+2*p+1}")
        a.i(f"s_add_u32 s12, s{SAI}, {tt*112*1024}")
        stag[tt] = a.i(f"buffer_store_dwordx4 {v(OUTR,4)}, v{L16}, {s(S_WS,4)}, s12 offen sc1")
        yield

    def flag(tt):
        a.wait_vm_id(stag[tt])
        a.i(f"s_add_u32 s12, s{SAF}, {tt*512}")
        post(12)

    def px_read(tt):
        ad = PXA if tt & 1 else PXB
        for g in range(4):
            a.i(f"ds_read_b128 {v(TMP+4*g,4)}, v{ad} offset:{g*1024}")

    def px_add():
        for p in range(8):
            a.i(f"v_pk_add_f32 {v(TMP+2*p,2)}, {v(TMP+2*p,2)}, {v(KA+2*p,2)}")

    def px_write(tt):
        ad = PXB if tt & 1 else PXA
        for g in range(4):
            a.i(f"ds_write_b128 v{ad}, {v(SA+4*g,4)} offset:{g*1024}")

    AO = [("v", 124 + 4 * k) for k in range(4)] + [("a", 80), ("a", 88), ("a", 92)] + [("a", 32 + 4 * k) for k in range(6)] + [("v", 112)]
    SAO, SAN, SFO = 14, 15, 75
    FL = 5

    def d_addr():
        a.i(f"s_lshl_b32 s12, s{SM}, 2")
        a.i(f"s_add_u32 s{SPT}, s12, s{SB}")
        a.i(f"s_sub_u32 s13, 3, s{SB}")
        a.i(f"s_add_u32 s83, s12, s13")
        a.i(f"s_mul_i32 s12, s{SW}, {14*1024}")
        a.i(f"s_add_u32 s12, s12, {ACT}")
        a.i(f"s_mul_i32 s{SAO}, s{SPT}, {112*1024}")
        a.i(f"s_add_u32 s{SAO}, s{SAO}, s12")
        a.i(f"s_mul_i32 s{SAN}, s83, {112*1024}")
        a.i(f"s_add_u32 s{SAN}, s{SAN}, s12")
        a.i(f"s_mul_i32 s12, s{SW}, 56")
        a.i(f"s_add_u32 s12, s12, {AFLAG}")
        a.i(f"s_lshl_b32 s{SFO}, s{SPT}, 9")
        a.i(f"s_add_u32 s{SFO}, s{SFO}, s12")
        a.i(f"s_lshl_b32 s74, s83, 9")
        a.i(f"s_add_u32 s74, s74, s12")
        a.i(f"v_lshrrev_b32 v7, 2, v{L16}")
        a.i("v_min_u32 v7, 52, v7")

    def fl_load(sr):
        return a.i(f"buffer_load_dword v{FL}, v7, {s(S_WS,4)}, s{sr} offen sc1")

    def fl_poll(t, sr):
        def chk():
            a.i(f"v_cmp_ne_u32 vcc, v{FL}, v{VTAG}")
        a.poll(t, chk, lambda: fl_load(sr))

    def act_load(sr, i):
        if i % 4 == 0 and i:
            a.i(f"s_add_u32 s{sr}, s{sr}, 4096")
        a.i(f"buffer_load_dwordx4 {R4(AO[i])}, v{L16}, {s(S_WS,4)}, s{sr} offen offset:{(i%4)*1024} sc1")

    def chain(*gens):
        for g in gens:
            yield from g

    def once(f, *args):
        f(*args)
        yield

    def g3_side():
        yield from epi(2)
        fl_poll(ftag[0], SFO)
        yield
        for i in range(4):
            wd_rd(i)
            yield
            act_load(SAO, i)
            yield
        a.wait(lg=0)
        for i in range(4):
            wd_dma(6 + i)
            if i < 3:
                act_load(SAO, 4 + i)
            yield

    ftag = {}
    side = {
        0: chain(ub_final(), once(y_stage, 1, 12), once(lambda: yl.__setitem__(3, y_loads(3))), stats_final(), once(y_stage, 2, 12)),
        1: chain(once(y_stage, 3, 12), once(wd_dma, 0), once(wd_dma, 1), epi(0), once(d_addr)),
        2: chain(once(wd_dma, 2), once(wd_dma, 3), once(flag, 0), epi(1)),
        3: chain(once(wd_dma, 4), once(wd_dma, 5), once(flag, 1), once(lambda: ftag.__setitem__(0, fl_load(SFO))), g3_side()),
    }
    PRE = 3
    for ks in range(5):
        yrd(0, ks)
    for tt in range(4):
        sd = side[tt]

        def step(n=1):
            for _ in range(n):
                next(sd, None)

        if tt == 0:
            order = [(ks, w) for ks in range(14) for w in "SK"]
        else:
            px_read(tt - 1)
            if tt == 1:
                for ks in range(5):
                    yrd(1, ks)
                for ks in range(PRE):
                    mf(1, ks, "S")
            px_add()
            order = [(ks, "K") for ks in range(PRE)] + [(ks, w) for ks in range(PRE, 14) for w in "SK"]
        for ks, w in order:
            mf(tt, ks, w)
            if w == "K":
                nk = ks + 5 + (1 if False else 0)
                if nk < 14:
                    yrd(tt, nk)
                elif tt in (1, 2):
                    if tt == 1 and nk == 14:
                        a.i(f"v_add_u32 v{YRD}, {2*28672}, v{YRD}")
                    yrd(tt + 1, nk - 14)
            step()
        for _ in sd:
            pass
        px_write(tt)
        if tt in (1, 2):
            for ks in range(PRE):
                mf(tt + 1, ks, "S")
        if tt == 3:
            wd_rd(4)
            wd_rd(5)
            for i in range(7, 13):
                act_load(SAO, i)
            a.wait(lg=0)
            wd_dma(10)
            wd_dma(11)
        a.bar(None)
        if tt == 0:
            a.st(29)
    a.st(30)
    px_read(3)
    flag(2)
    px_add()
    for _ in epi(3):
        pass
    act_load(SAO, 13)
    wd_dma(12)
    wd_dma(13)
    if STOP <= 4:
        flag(3)
        a.flush()
        a.i("s_branch fin")
        return
    a.i(f"s_lshl_b32 s12, s{SW}, 10")
    a.i(f"v_add_u32 v2, s12, v{L16}")
    a.i("v_lshrrev_b32 v3, 8, v2")
    a.i("v_bfe_u32 v4, v2, 4, 4")
    a.i("v_mul_u32_u24 v10, 896, v3")
    a.i("v_lshl_add_u32 v10, v4, 3, v10")
    a.i("v_lshlrev_b32 v11, 5, v4")
    a.i("v_xor_b32 v4, v4, v3")
    a.i("v_and_b32 v4, 15, v4")
    a.i("v_lshlrev_b32 v4, 4, v4")
    a.i("v_and_b32 v6, 7, v3")
    a.i("v_lshl_add_u32 v4, v6, 8, v4")
    a.i("v_lshrrev_b32 v3, 3, v3")
    a.i("v_lshl_add_u32 v3, v3, 14, v4")
    a.i(f"v_lshrrev_b32 v6, 1, v{L16}")
    a.i(f"s_lshl_b32 s12, s{SJJ}, 9")
    a.i(f"s_add_u32 s42, s12, {MODG+2240*8}")
    a.i(f"s_lshl_b32 s43, s{SM}, 9")
    a.i(f"s_add_u32 s43, s43, {FLAGX}")

    def gb_loads():
        a.i(f"buffer_load_dwordx4 v[144:147], v11, {s(S_WS,4)}, s42 offen sc1")
        a.i(f"buffer_load_dwordx4 v[148:151], v11, {s(S_WS,4)}, s42 offen offset:16 sc1")
        return a.i(f"buffer_load_dwordx2 v[156:157], v6, {s(S_WS,4)}, s43 offen sc1")

    def dmf(i):
        f = GU_FIN[i]
        for nt in range(2):
            acc = 80 + 16 * nt
            a.i(f"{MF} {v(acc,16)}, {R4(off(f,4*nt))}, {R4(AO[i])}, {v(acc,16) if i else 0}")

    a.i(f"v_bfe_u32 v4, v{L16}, 4, 5")
    a.i(f"v_lshrrev_b32 v2, 9, v{L16}")
    a.i("v_xor_b32 v2, v2, v4")
    a.i("v_and_b32 v2, 15, v2")
    a.i("v_lshlrev_b32 v2, 4, v2")
    a.i("v_and_b32 v12, 7, v4")
    a.i("v_lshl_add_u32 v2, v12, 8, v2")
    a.i("v_lshrrev_b32 v4, 3, v4")
    a.i("v_lshl_add_u32 v2, v4, 14, v2")
    a.i(f"v_add_u32 v2, s{SSL}, v2")

    def slab_write(t):
        for nt in range(2):
            for g in range(4):
                c = nt * 8 + g * 2
                a.i(f"v_xor_b32 v4, {c << 4}, v2")
                a.i(f"ds_write_b128 v4, {v(80+16*nt+4*g,4)} offset:{0}")

    def reduce(t, x1r, so):
        for k in range(8):
            a.i(f"ds_read_b128 {v(80+4*k,4)}, v3 offset:{k*2048}")
        a.i(f"v_lshlrev_b32 v112, 16, v{x1r}")
        a.i(f"v_and_b32 v113, 0xffff0000, v{x1r}")
        a.i(f"v_lshlrev_b32 v114, 16, v{x1r+1}")
        a.i(f"v_and_b32 v115, 0xffff0000, v{x1r+1}")
        for st_ in (4, 8, 16):
            for k in range(0, 32, 2 * st_):
                for h in range(2):
                    a.i(f"v_pk_add_f32 {v(80+k+2*h,2)}, {v(80+k+2*h,2)}, {v(80+k+st_+2*h,2)}")
        for c in range(4):
            a.i(f"v_fmac_f32 v{112+c}, v{144+2*c}, v{80+c}")
        a.i("v_cvt_pk_bf16_f32 v112, v112, v113")
        a.i("v_cvt_pk_bf16_f32 v113, v114, v115")
        a.i(f"buffer_store_dwordx2 v[112:113], v10, {s(S_OUT,4)}, s{so} offen")

    flag(3)
    gbl = gb_loads()
    for i in range(6, 10):
        wd_rd(i)
    for i in range(14):
        if i in (4, 6, 8, 10):
            wd_rd(10 + (i - 4) // 2)
        dmf(i)
    ftag[1] = fl_load(74)
    a.poll(gbl, lambda: a.chk_tag([145, 147, 149, 151, 156, 157], 4, VTAG), gb_loads)
    a.i(f"s_lshl_b32 s12, s{SJJ}, 7")
    a.i(f"s_mul_i32 s80, s{SPT}, {32*896}")
    a.i("s_add_u32 s80, s80, s12")
    a.i(f"s_mul_i32 s81, s83, {32*896}")
    a.i("s_add_u32 s81, s81, s12")
    a.i(f"s_add_u32 s12, s80, {X1}")
    a.i(f"s_add_u32 s13, s81, {X1}")
    a.i(f"buffer_load_dwordx2 v[152:153], v10, {s(S_WS,4)}, s12 offen sc1")
    a.i(f"buffer_load_dwordx2 v[154:155], v10, {s(S_WS,4)}, s13 offen sc1")
    fl_poll(ftag[1], 74)
    AO[13] = ("v", 116)
    for i in range(14):
        act_load(SAN, i)
    slab_write(0)
    a.i(f"v_add_u32 v2, {SLAB[1]}, v2")
    a.bar(None)
    reduce(0, 152, 80)
    a.i(f"v_add_u32 v3, {SLAB[1]}, v3")
    for i in range(14):
        dmf(i)
    slab_write(1)
    a.bar(None)
    reduce(1, 154, 81)
    a.flush()


def main(out):
    hdr = open(f"cdna_kernels/{NAME}.s.ref").read().split("; Override")[0]
    a = G()
    kernel(a)
    finish(a)
    L = NAME + "_kernel"
    t = hdr + f"; @launch grid=(256,1,1) block=(512,1,1) lds={LDS_SZ}\n"
    t += '.amdgcn_target "amdgcn-amd-amdhsa--gfx950"\n.text\n'
    t += f".globl {L}\n" + a.text()
    t += f""".section .rodata,"a"
.p2align 6
.amdhsa_kernel {L}
  .amdhsa_next_free_vgpr 256
  .amdhsa_next_free_sgpr 102
  .amdhsa_accum_offset 160
  .amdhsa_group_segment_fixed_size 0
  .amdhsa_kernarg_size 104
  .amdhsa_user_sgpr_count 2
  .amdhsa_user_sgpr_kernarg_segment_ptr 1
  .amdhsa_system_sgpr_workgroup_id_x 1
.end_amdhsa_kernel
"""
    open(out, "w").write(t)
    print("instructions:", a.count, "nop states added:", a.nops_added, "bytes:", len(t))


if __name__ == "__main__":
    for x in sys.argv[2:]:
        if x == "prof":
            PROF = True
        if x.startswith("stop="):
            STOP = int(x[5:])
    main(sys.argv[1])
```
